```python
import torch

def _softmax(x, axis=-1):
    return torch.softmax(x, dim=axis)
def _gelu(x):
    return torch.nn.functional.gelu(x, approximate="tanh")
def _silu(x):
    return torch.nn.functional.silu(x)
def _sigmoid(x):
    return torch.sigmoid(x)
def _layernorm(x, axis=-1, eps=1e-5):
    m = x.mean(dim=axis, keepdim=True)
    v = x.var(dim=axis, keepdim=True, unbiased=False)
    return (x - m) / torch.sqrt(v + eps)
def _scatter_add(tgt, idx, src, axis=0):
    return tgt.clone().index_add_(axis, idx, src)
def _segment_sum(src, seg, n):
    out = torch.zeros((n,) + src.shape[1:], dtype=src.dtype)
    return out.index_add_(0, seg, src)
def _pad(x, pw):
    flat = tuple(v for pair in reversed(pw) for v in pair)
    return torch.nn.functional.pad(x, flat)

kernel_name = 'concat_heads__linear_kernel_hedgehog__ssm_conv_s4__prompt'

def setup_inputs():

    _w = (lambda a: (lambda t: t.to(torch.bfloat16) if t.is_floating_point() else t)(torch.as_tensor(a)))
    def _A_setup():
        B, S, D, H = 1, 2048, 448, 16
        Dh = D // H
        return {
            "x": _w((lambda *s: torch.randn(*s, dtype=torch.bfloat16) * 0.4)(B, S, D)),
            "wqkv": _w((lambda *s: torch.randn(*s, dtype=torch.bfloat16) * 0.4)(D, 3 * D)),
            "w_phi": _w((lambda *s: torch.randn(*s, dtype=torch.bfloat16) * 0.4)(H, Dh, Dh) * (Dh ** -0.5)),
            "wo": _w((lambda *s: torch.randn(*s, dtype=torch.bfloat16) * 0.05)(D, D)),
        }
    _A_in = _A_setup()

    def _B_setup():
        B, L, D, N = 1, 2048, 448, 256
        A_re = -(lambda _x: torch.exp(torch.as_tensor(_x)))((lambda *s: torch.randn(*s, dtype=torch.bfloat16) * 3.2)(D, N))
        A_im = torch.pi * (lambda *s: torch.randn(*s, dtype=torch.bfloat16) * 0.2)(D, N)
        B_re = (lambda *s: torch.randn(*s, dtype=torch.bfloat16) * 0.4)(D, N)
        B_im = (lambda *s: torch.randn(*s, dtype=torch.bfloat16) * 0.4)(D, N)
        C_re = (lambda *s: torch.randn(*s, dtype=torch.bfloat16) * 0.4)(D, N)
        C_im = (lambda *s: torch.randn(*s, dtype=torch.bfloat16) * 0.4)(D, N)
        log_dt = (lambda *s: torch.randn(*s, dtype=torch.bfloat16) * 0.2)(D) * 0.5 - 4.0
        Dskip = (lambda *s: torch.randn(*s, dtype=torch.bfloat16) * 0.4)(D)
        return {
            "u": _w((lambda *s: torch.randn(*s, dtype=torch.bfloat16) * 0.05)(B, L, D)),
            "A_re": _w(A_re),
            "A_im": _w(A_im),
            "B_re": _w(B_re),
            "B_im": _w(B_im),
            "C_re": _w(C_re),
            "C_im": _w(C_im),
            "log_dt": _w(log_dt),
            "Dskip": _w(Dskip),
        }
    _B_in = _B_setup()

    return {
        "A_x": _A_in["x"],
        "A_wqkv": _A_in["wqkv"],
        "A_w_phi": _A_in["w_phi"],
        "A_wo": _A_in["wo"],
        "B_u": _B_in["u"],
        "B_A_re": _B_in["A_re"],
        "B_A_im": _B_in["A_im"],
        "B_B_re": _B_in["B_re"],
        "B_B_im": _B_in["B_im"],
        "B_C_re": _B_in["C_re"],
        "B_C_im": _B_in["C_im"],
        "B_log_dt": _B_in["log_dt"],
        "B_Dskip": _B_in["Dskip"],
    }

def reference(A_x, A_wqkv, A_w_phi, A_wo, B_u, B_A_re, B_A_im, B_B_re, B_B_im, B_C_re, B_C_im, B_log_dt, B_Dskip):
    def _A_ref(x, wqkv, w_phi, wo):
        B, S, D = x.shape
        H = 16; Dh = D // H
        qkv = (lambda x, *d: x.permute(*d))((x @ wqkv).reshape(B, S, 3, H, Dh), 2, 0, 3, 1, 4)
        q, k, v = qkv[0], qkv[1], qkv[2]
        pq = torch.einsum("bhsd,hdf->bhsf", q, w_phi)
        pk = torch.einsum("bhsd,hdf->bhsf", k, w_phi)
        phi_q = torch.concatenate([_softmax(pq, axis=-1), _softmax(-pq, axis=-1)], axis=-1)
        phi_k = torch.concatenate([_softmax(pk, axis=-1), _softmax(-pk, axis=-1)], axis=-1)
        kv = torch.einsum("bhsf,bhsd->bhfd", phi_k, v)
        z  = torch.einsum("bhsf->bhf", phi_k)
        num = torch.einsum("bhqf,bhfd->bhqd", phi_q, kv)
        den = torch.einsum("bhqf,bhf->bhq", phi_q, z)[..., None] + 1e-6
        o = num / den
        return (lambda x, *d: x.permute(*d))(o, 0, 2, 1, 3).reshape(B, S, D) @ wo

    def _B_ref(u, A_re, A_im, B_re, B_im, C_re, C_im, log_dt, Dskip):
        Bsz, L, D = u.shape
        dt = torch.exp(log_dt)[:, None]
        A = A_re + 1j * A_im
        Bc = B_re + 1j * B_im
        Cc = C_re + 1j * C_im
        logdA = dt * A
        dB = dt * Bc
        l = (lambda x, dt: x.to(dt))(torch.arange(L), A_re.dtype)
        P = torch.exp(logdA[:, :, None] * l[None, None, :])
        K = torch.einsum("dn,dnl,dn->dl", Cc, P, dB).real
        L2 = 2 * L
        Kp = _pad(K, ((0, 0), (0, L)))
        up = (lambda x, *d: x.permute(*d))(u, 0, 2, 1)
        up = _pad(up, ((0, 0), (0, 0), (0, L)))
        Kf = (lambda x, axes=(-2,-1): torch.fft.rfft2(x.float(), dim=axes))(Kp[:, None, :], axes=(-2, -1))
        Uf = (lambda x, axes=(-2,-1): torch.fft.rfft2(x.float(), dim=axes))(up[:, :, None, :], axes=(-2, -1))
        Yf = Uf * Kf[None, :, :, :]
        y = (lambda x, s, axes=(-2,-1): torch.fft.irfft2(x, s=s, dim=axes).to(torch.bfloat16))(Yf, (1, L2), axes=(-2, -1))[:, :, 0, :L]
        y = (lambda x, *d: x.permute(*d))(y, 0, 2, 1) + u * Dskip[None, None, :]
        return y

    a = _A_ref(A_x, A_wqkv, A_w_phi, A_wo)
    b = _B_ref(B_u, B_A_re, B_A_im, B_B_re, B_B_im, B_C_re, B_C_im, B_log_dt, B_Dskip)
    return torch.concatenate([a, b], axis=-1)
```

```python
class Asm:
    def __init__(self):
        self.lines = []
        self._uid = 0
    def __call__(self, s=""):
        for ln in s.split("\n"):
            ln = ln.strip()
            if ln:
                self.lines.append(("" if ln.endswith(":") else "    ") + ln)
    def raw(self, s):
        self.lines.append(s)
    def label(self, base):
        self._uid += 1
        return f"{base}_{self._uid}"
    def text(self):
        return "\n".join(self.lines) + "\n"

def v(i, n=1):
    return f"v{i}" if n == 1 else f"v[{i}:{i+n-1}]"
def a(i, n=1):
    return f"a{i}" if n == 1 else f"a[{i}:{i+n-1}]"
def s(i, n=1):
    return f"s{i}" if n == 1 else f"s[{i}:{i+n-1}]"

def kernel_head(name):
    return (f".text\n.globl {name}\n.p2align 8\n.type {name},@function\n{name}:\n")

def kernel_desc(name, vgpr=256, sgpr=102, accum=None, extra=""):
    if accum is None:
        accum = (min(vgpr, 256) + 3) // 4 * 4
    return (f".amdhsa_kernel {name}\n"
            f"  .amdhsa_next_free_vgpr {vgpr}\n"
            f"  .amdhsa_next_free_sgpr {sgpr}\n"
            f"  .amdhsa_accum_offset {accum}\n"
            f"  .amdhsa_group_segment_fixed_size 0\n"
            f"  .amdhsa_kernarg_size 128\n"
            f"  .amdhsa_user_sgpr_count 2\n"
            f"  .amdhsa_user_sgpr_kernarg_segment_ptr 1\n"
            f"  .amdhsa_system_sgpr_workgroup_id_x 1\n"
            f"{extra}"
            f".end_amdhsa_kernel\n")

def srd(A, dst, src, nbytes):
    A(f"""s_mov_b32 s{dst}, s{src}
    s_mov_b32 s{dst+1}, s{src+1}
    s_mov_b32 s{dst+2}, {nbytes}
    s_mov_b32 s{dst+3}, 0x00020000""")


import os
STAMPS = os.environ.get("STAMPS", "0") == "1"
WS_STAMP = 12 << 20
class Stamper:
    def __init__(self, A, base=66):
        self.A = A; self.n = 0; self.base = base; self.names = []
    def __call__(self, name, real=False):
        if not STAMPS: return
        r = self.base + 2*self.n
        assert r + 1 <= 101
        self.A(f"{'s_memrealtime' if real else 's_memtime'} s[{r}:{r+1}]")
        self.names.append(name); self.n += 1
    def dump(self, sWG, sW, swsbase=34, vt=250, kern=0):
        if not STAMPS: return
        A = self.A
        A("s_waitcnt lgkmcnt(0)")
        A(f"v_mov_b32 v{vt}, 0")
        for i in range(self.n):
            A(f"v_writelane_b32 v{vt}, s{self.base+2*i}, {i}")
        A(f"""s_lshl_b32 s{self.base}, s{sWG}, 3
        s_add_u32 s{self.base}, s{self.base}, s{sW}
        s_lshl_b32 s{self.base}, s{self.base}, 8
        s_add_u32 s{self.base}, s{self.base}, {WS_STAMP + kern*(1<<20)}
        v_lshlrev_b32 v{vt+1}, 2, v0
        v_and_b32 v{vt+1}, 0xff, v{vt+1}
        v_add_u32 v{vt+1}, s{self.base}, v{vt+1}
        global_store_dword v{vt+1}, v{vt}, s[{swsbase}:{swsbase+1}]""")
        print("stamps:", self.names)
```

```python
from asmlib import *
SLOT = 40960
WS_PHQ = 1 << 20
PART_W = 9216
L2E = 0x3fb8aa3b

def gen_A1(A):
    sRT, sHP, sW, sRG, sHH, sH = 36, 37, 38, 39, 40, 41
    sT0, sT1, sT2 = 42, 43, 52
    SX, SW_, SP, SWS = 44, 48, 56, 60
    sXM, sWM, sFirst, sPHQ = 53, 54, 55, 64
    vLane = 1
    vXO0, vXO1, vWO = 2, 3, 4
    vXR, vWR = 5, 9
    vXC, vWC = 10, 14
    vT = 16
    vWT = 32
    vWP = 48
    vID = 56
    aK, aQ, aV = 64, 80, 96
    FR = 112
    vTK, vFL, vPW, vPR, vPQ, vAO, vFA = 176, 177, 178, 179, 180, 181, 182
    ST = Stamper(A)
    ST("rt0", True); ST("start")
    A(f"""
    s_and_b32 s{sT0}, s2, 7
    s_lshl_b32 s{sT0}, s{sT0}, 1
    s_bfe_u32 s{sT1}, s2, 0x10003
    s_add_u32 s{sRT}, s{sT0}, s{sT1}
    s_lshr_b32 s{sHP}, s2, 4
    v_lshrrev_b32 v{vT}, 6, v0
    v_and_b32 v{vLane}, 63, v0
    s_nop 0
    v_readfirstlane_b32 s{sW}, v{vT}
    s_mov_b32 s{sFirst}, 0
    s_and_b32 s{sRG}, s{sW}, 3
    s_lshr_b32 s{sHH}, s{sW}, 2
    s_lshl_b32 s{sH}, s{sHP}, 1
    s_add_u32 s{sH}, s{sH}, s{sHH}
    s_lshl_b32 s{sXM}, s{sW}, 11
    s_lshl_b32 s{sWM}, s{sW}, 10
    s_add_u32 s{sWM}, s{sWM}, 16384
    """)
    A(f"""
    v_lshrrev_b32 v{vT}, 3, v{vLane}
    v_and_b32 v{vT+1}, 7, v{vLane}
    v_lshrrev_b32 v{vT+2}, 4, v{vLane}
    s_lshl_b32 s{sT0}, s{sRT}, 7
    s_lshl_b32 s{sT1}, s{sW}, 4
    s_add_u32 s{sT0}, s{sT0}, s{sT1}
    v_add_u32 v{vT+3}, s{sT0}, v{vT}
    v_mul_u32_u24 v{vT+3}, 896, v{vT+3}
    v_xor_b32 v{vT+4}, v{vT+1}, v{vT+2}
    v_lshl_add_u32 v{vXO0}, v{vT+4}, 4, v{vT+3}
    v_xor_b32 v{vT+4}, 4, v{vT+4}
    v_lshl_add_u32 v{vXO1}, v{vT+4}, 4, v{vT+3}
    v_add_u32 v{vXO1}, {8*896}, v{vXO1}
    s_lshl_b32 s{sT1}, s{sW}, 3
    v_add_u32 v{vT+3}, s{sT1}, v{vT}
    v_mul_u32_u24 v{vT+3}, 2688, v{vT+3}
    v_and_b32 v{vT+4}, 1, v{vT+2}
    v_lshlrev_b32 v{vT+4}, 2, v{vT+4}
    v_xor_b32 v{vT+4}, v{vT+4}, v{vT+1}
    v_lshl_add_u32 v{vWO}, v{vT+4}, 4, v{vT+3}
    s_mul_i32 s{sT0}, s{sHP}, 112
    v_add_u32 v{vWO}, s{sT0}, v{vWO}
    s_waitcnt lgkmcnt(0)
    """)
    srd(A, SX, 4, 2048*896)
    srd(A, SW_, 6, 448*2688)
    srd(A, SP, 8, 16*1568)
    srd(A, SWS, 34, 0x10000000)
    lab = A.label("A1_tk")
    A(f"""
    s_cmp_lg_u32 s{sW}, 0
    s_cbranch_scc1 {lab}
    s_lshl_b32 s{sT0}, s{sHP}, 2
    v_mov_b32 v{vT+5}, s{sT0}
    v_mov_b32 v{vT+6}, 1
    s_mov_b64 exec, 1
    global_atomic_add v{vTK}, v{vT+5}, v{vT+6}, s[32:33] sc0
    s_mov_b64 exec, -1
    {lab}:
    """)
    def dma(st):
        sl = (st % 4)*SLOT
        for i, vo in ((0, vXO0), (1, vXO1)):
            A(f"""s_add_u32 m0, s{sXM}, {sl + 1024*i}
            s_movk_i32 s{sT2}, {st*128}
            buffer_load_dwordx4 v{vo}, s[{SX}:{SX+3}], s{sT2} offen lds""")
        for t in range(3):
            A(f"""s_add_u32 m0, s{sWM}, {sl + 8192*t}
            s_mov_b32 s{sT2}, {st*64*2688 + t*896}
            buffer_load_dwordx4 v{vWO}, s[{SW_}:{SW_+3}], s{sT2} offen lds""")
    ST("pre_dma")
    for st in range(4): dma(st)
    ST("dma_issued")
    A(f"""
    v_and_b32 v{vT}, 31, v{vLane}
    v_lshrrev_b32 v{vT+1}, 5, v{vLane}
    v_add_u32 v{vT+2}, -4, v{vT}
    v_cmp_gt_u32 vcc, 28, v{vT}
    s_mul_i32 s{sT0}, s{sH}, 1568
    v_mul_u32_u24 v{vT+3}, 224, v{vT+1}
    v_cndmask_b32 v{vT+2}, v{vT+2}, v{vT}, vcc
    v_lshl_add_u32 v{vT+2}, v{vT+2}, 1, v{vT+3}
    v_add_u32 v{vT+2}, s{sT0}, v{vT+2}
    v_lshlrev_b32 v{vT+4}, 20, v{vT+1}
    v_add_u32 v{vT+4}, v{vT+4}, v{vT+2}
    """)
    for j in range(2):
        for e in range(8):
            d = 16*j + 8*(e >> 2) + (e & 3)
            ad = vT+4 if (j == 1 and e >= 4) else vT+2
            A(f"buffer_load_ushort v{vWT+8*j+e}, v{ad}, s[{SP}:{SP+3}], 0 offen offset:{d*56}")
    A(f"""
    v_bfe_u32 v{vT+2}, v{vT}, 1, 3
    v_xor_b32 v{vT+2}, v{vT+2}, v{vT+1}
    s_lshl_b32 s{sT0}, s{sRG}, 12
    v_lshlrev_b32 v{vT+3}, 7, v{vT}
    v_add_u32 v{vT+3}, s{sT0}, v{vT+3}
    """)
    for j in range(4):
        A(f"""v_xor_b32 v{vT+4}, {2*j}, v{vT+2}
        v_lshl_add_u32 v{vXR+j}, v{vT+4}, 4, v{vT+3}""")
    A(f"""
    v_bfe_u32 v{vT+2}, v{vLane}, 2, 2
    v_and_b32 v{vT+3}, 3, v{vLane}
    v_bfe_u32 v{vT+4}, v{vLane}, 4, 1
    v_lshlrev_b32 v{vT+3}, 3, v{vT+3}
    v_lshl_add_u32 v{vT+3}, v{vT+4}, 5, v{vT+3}
    s_mul_i32 s{sT0}, s{sHH}, 56
    v_add_u32 v{vT+3}, s{sT0}, v{vT+3}
    v_lshrrev_b32 v{vT+4}, 1, v{vT+2}
    v_lshlrev_b32 v{vT+4}, 6, v{vT+4}
    v_xor_b32 v{vT+3}, v{vT+3}, v{vT+4}
    v_lshl_add_u32 v{vT+3}, v{vT+2}, 7, v{vT+3}
    v_lshl_add_u32 v{vWR}, v{vT+1}, 10, v{vT+3}
    v_add_u32 v{vWR}, 16384, v{vWR}
    """)
    A(f"""
    v_lshlrev_b32 v{vT+2}, 2, v{vT+1}
    v_sub_u32 v{vT+2}, v{vT}, v{vT+2}
    v_mov_b32 v{vT+5}, 0x3f80
    v_mov_b32 v{vT+6}, 0x3f800000
    """)
    for j in range(2):
        for p in range(4):
            e0 = 2*p
            f0 = 16*j + 8*(e0 >> 2) + (e0 & 3)
            A(f"""v_cmp_eq_u32 vcc, {f0}, v{vT+2}
            v_mov_b32 v{vID+4*j+p}, 0
            s_nop 0
            v_cndmask_b32 v{vID+4*j+p}, v{vID+4*j+p}, v{vT+5}, vcc
            v_cmp_eq_u32 vcc, {f0+1}, v{vT+2}
            s_nop 1
            v_cndmask_b32 v{vID+4*j+p}, v{vID+4*j+p}, v{vT+6}, vcc""")
    A(f"""
    s_mul_i32 s{sT0}, s{sW}, {PART_W}
    v_lshl_add_u32 v{vPW}, v{vLane}, 4, s{sT0}
    s_mul_i32 s{sT0}, s{sHH}, {4*PART_W}
    s_mul_i32 s{sT1}, s{sRG}, 2304
    s_add_u32 s{sT0}, s{sT0}, s{sT1}
    v_lshrrev_b32 v{vT+2}, 2, v{vLane}
    v_bfe_u32 v{vT+3}, v{vLane}, 1, 1
    v_and_b32 v{vT+4}, 1, v{vLane}
    v_mul_u32_u24 v{vT+3}, 1152, v{vT+3}
    v_lshl_add_u32 v{vT+3}, v{vT+2}, 4, v{vT+3}
    v_lshl_add_u32 v{vT+3}, v{vT+4}, 3, v{vT+3}
    v_add_u32 v{vPR}, s{sT0}, v{vT+3}
    s_lshl_b32 s{sT0}, s{sRT}, 2
    s_add_u32 s{sT0}, s{sT0}, s{sRG}
    s_lshl_b32 s{sT0}, s{sT0}, 4
    s_add_u32 s{sT0}, s{sT0}, s{sH}
    s_lshl_b32 s{sT0}, s{sT0}, 12
    v_lshl_add_u32 v{vPQ}, v{vLane}, 4, s{sT0}
    s_mov_b32 s{sPHQ}, {WS_PHQ}
    s_lshl_b32 s{sT0}, s{sH}, 12
    s_lshl_b32 s{sT1}, s{sRG}, 10
    s_add_u32 s{sT0}, s{sT0}, s{sT1}
    v_lshl_add_u32 v{vAO}, v{vLane}, 2, s{sT0}
    """)
    def wait(n, nfirst):
        if n == nfirst:
            A(f"s_waitcnt vmcnt({n})"); return
        l1, l2 = A.label("A1_w"), A.label("A1_x")
        A(f"""s_cmp_eq_u32 s{sFirst}, 0
        s_cbranch_scc1 {l1}
        s_waitcnt vmcnt({nfirst})
        s_branch {l2}
        {l1}:
        s_waitcnt vmcnt({n})
        {l2}:""")
    waits = [(31, 31), (26, 34), (26, 34), (26, 34), (10, 10), (5, 6), (0, 1)]
    for st in range(7):
        if st == 0: ST("setup_done")
        wait(*waits[st])
        A("s_barrier")
        if st in (0, 1, 3, 5, 6): ST(f"st{st}")
        sl = (st % 4)*SLOT
        if st == 0:
            lab = A.label("A1_z")
            A(f"""s_cmp_lg_u32 s{sW}, 0
            s_cbranch_scc1 {lab}
            v_readfirstlane_b32 s{sT0}, v{vTK}
            s_cmp_lg_u32 s{sT0}, 0
            s_cbranch_scc1 {lab}
            s_mov_b32 s{sFirst}, 1
            s_lshl_b32 s{sT0}, s{sHP}, 13
            v_lshl_add_u32 v{vT+8}, v{vLane}, 4, s{sT0}
            v_mov_b32 v{vT+12}, 0
            v_mov_b32 v{vT+13}, 0
            v_mov_b32 v{vT+14}, 0
            v_mov_b32 v{vT+15}, 0
            v_add_u32 v{vT+9}, 4096, v{vT+8}""")
            for i in range(8):
                A(f"buffer_store_dwordx4 {v(vT+12,4)}, v{vT+8+(i>>2)}, s[{SWS}:{SWS+3}], 0 offen offset:{1024*(i&3)} sc1")
            A(f"{lab}:")
        if st == 4:
            lab = A.label("A1_f")
            A(f"""s_cmp_eq_u32 s{sFirst}, 0
            s_cbranch_scc1 {lab}
            s_lshl_b32 s{sT0}, s{sHP}, 2
            v_mov_b32 v{vT+8}, s{sT0}
            v_mov_b32 v{vT+9}, 1
            s_mov_b64 exec, 1
            global_store_dword v{vT+8}, v{vT+9}, s[32:33] offset:64 sc1
            s_mov_b64 exec, -1
            {lab}:""")
        if 1 <= st <= 3: dma(st+3)
        for j in range(4):
            A(f"v_add_u32 v{vXC+j}, {sl}, v{vXR+j}")
        A(f"v_add_u32 v{vWC}, {sl}, v{vWR}")
        def rd(j):
            b = FR + 16*j
            A(f"ds_read_b128 {v(b,4)}, v{vXC+j}")
            for t in (1, 0, 2):
                for e2 in range(2):
                    A(f"ds_read_b64_tr_b16 {v(b+4+4*t+2*e2,2)}, v{vWC} offset:{t*8192+j*2048+e2*512}")
        def mm(j):
            b = FR + 16*j
            z = (st == 0 and j == 0)
            A(f"v_mfma_f32_32x32x16_bf16 {v(aK,16)}, {v(b+8,4)}, {v(b,4)}, {'0' if z else v(aK,16)}")
            A(f"v_mfma_f32_32x32x16_bf16 {v(aQ,16)}, {v(b+4,4)}, {v(b,4)}, {'0' if z else v(aQ,16)}")
            A(f"v_mfma_f32_32x32x16_bf16 {v(aV,16)}, {v(b,4)}, {v(b+12,4)}, {'0' if z else v(aV,16)}")
        rd(0); rd(1)
        A("s_waitcnt lgkmcnt(7)"); mm(0)
        rd(2)
        A("s_waitcnt lgkmcnt(7)"); mm(1)
        rd(3)
        A("s_waitcnt lgkmcnt(7)"); mm(2)
        if st == 5:
            for p in range(8):
                A(f"v_lshl_or_b32 v{vWP+p}, v{vWT+2*p+1}, 16, v{vWT+2*p}")
        A("s_waitcnt lgkmcnt(0)"); mm(3)
    ST("main_done")
    lab = A.label("A1_p")
    A(f"""s_lshl_b32 s{sT0}, s{sHP}, 2
    v_mov_b32 v{vFA}, s{sT0}
    s_cmp_lg_u32 s{sW}, 0
    s_cbranch_scc1 {lab}
    global_load_dword v{vFL}, v{vFA}, s[32:33] offset:64 sc1
    {lab}:""")
    PKK, PKQ, PKV = 112, 120, 128
    pK, pQ = 136, 152
    A("s_nop 7\ns_nop 7")
    for p in range(8): A(f"v_cvt_pk_bf16_f32 v{PKK+p}, v{aK+2*p}, v{aK+2*p+1}")
    for p in range(8): A(f"v_cvt_pk_bf16_f32 v{PKQ+p}, v{aQ+2*p}, v{aQ+2*p+1}")
    A(f"v_mfma_f32_32x32x16_bf16 {v(pK,16)}, {v(vWP,4)}, {v(PKK,4)}, 0")
    A(f"v_mfma_f32_32x32x16_bf16 {v(pK,16)}, {v(vWP+4,4)}, {v(PKK+4,4)}, {v(pK,16)}")
    A(f"v_mfma_f32_32x32x16_bf16 {v(pQ,16)}, {v(vWP,4)}, {v(PKQ,4)}, 0")
    A(f"v_mfma_f32_32x32x16_bf16 {v(pQ,16)}, {v(vWP+4,4)}, {v(PKQ+4,4)}, {v(pQ,16)}")
    A(f"""v_and_b32 v{vT}, 31, v{vLane}
    v_cmp_eq_u32 vcc, 28, v{vT}
    v_mov_b32 v{vT+1}, 0x3f803f80""")
    for p in range(8):
        A(f"v_cvt_pk_bf16_f32 v{PKV+p}, v{aV+2*p}, v{aV+2*p+1}")
    for p in range(8):
        A(f"v_cndmask_b32 v{PKV+p}, v{PKV+p}, v{vT+1}, vcc")
    vC, vM = 24, 26
    A(f"""v_mov_b32 v{vC}, {hex(L2E)}
    v_mov_b32 v{vC+1}, {hex(L2E | 0x80000000)}
    v_cmp_gt_u32 vcc, 32, v{vLane}
    v_mov_b32 v{vM}, 0
    s_nop 0
    v_cndmask_b32 v{vM}, v{vM}, 1.0, vcc""")
    def softmax(P, EP, EN, OUT):
        mx, mx2, mn, mn2 = vT, vT+1, vT+2, vT+3
        A(f"""v_max3_f32 v{mx}, v{P}, v{P+1}, v{P+2}
        v_min3_f32 v{mn}, v{P}, v{P+1}, v{P+2}
        v_max3_f32 v{mx2}, v{P+3}, v{P+4}, v{P+5}
        v_min3_f32 v{mn2}, v{P+3}, v{P+4}, v{P+5}""")
        for k in range(6, 14, 4):
            A(f"""v_max3_f32 v{mx}, v{mx}, v{P+k}, v{P+k+1}
            v_min3_f32 v{mn}, v{mn}, v{P+k}, v{P+k+1}
            v_max3_f32 v{mx2}, v{mx2}, v{P+k+2}, v{P+k+3}
            v_min3_f32 v{mn2}, v{mn2}, v{P+k+2}, v{P+k+3}""")
        A(f"""v_max3_f32 v{mx}, v{mx}, v{P+14}, v{P+15}
        v_min3_f32 v{mn}, v{mn}, v{P+14}, v{P+15}
        v_max_f32 v{mx}, v{mx}, v{mx2}
        v_min_f32 v{mn}, v{mn}, v{mn2}
        v_mov_b32 v{mx2}, v{mx}
        v_mov_b32 v{mn2}, v{mn}
        s_nop 1
        v_permlane32_swap_b32 v{mx}, v{mx2}
        v_permlane32_swap_b32 v{mn}, v{mn2}
        s_nop 0
        v_max_f32 v{mx}, v{mx}, v{mx2}
        v_min_f32 v{mn}, v{mn}, v{mn2}
        v_mul_f32 v{vT+4}, v{vC+1}, v{mx}
        v_mul_f32 v{vT+5}, v{vC}, v{mn}""")
        N = vT+4
        for k in range(0, 16, 2):
            A(f"v_pk_fma_f32 {v(EP+k,2)}, {v(P+k,2)}, {v(vC,2)}, {v(N,2)} op_sel:[0,0,0] op_sel_hi:[1,0,0]")
            A(f"v_pk_fma_f32 {v(EN+k,2)}, {v(P+k,2)}, {v(vC,2)}, {v(N,2)} op_sel:[0,1,1] op_sel_hi:[1,1,1]")
        for k in range(16):
            A(f"v_exp_f32 v{EP+k}, v{EP+k}")
            A(f"v_exp_f32 v{EN+k}, v{EN+k}")
        SP_, SN_, TP, TN = vT, vT+2, vT+4, vT+6
        A(f"""v_pk_add_f32 {v(SP_,2)}, {v(EP,2)}, {v(EP+2,2)}
        v_pk_add_f32 {v(SN_,2)}, {v(EN,2)}, {v(EN+2,2)}
        v_pk_add_f32 {v(TP,2)}, {v(EP+12,2)}, {v(EP+14,2)}
        v_pk_add_f32 {v(TN,2)}, {v(EN+12,2)}, {v(EN+14,2)}""")
        for k in range(4, 12, 2):
            A(f"""v_pk_add_f32 {v(SP_,2)}, {v(SP_,2)}, {v(EP+k,2)}
            v_pk_add_f32 {v(SN_,2)}, {v(SN_,2)}, {v(EN+k,2)}""")
        A(f"""v_pk_fma_f32 {v(SP_,2)}, {v(TP,2)}, {v(vM,2)}, {v(SP_,2)} op_sel:[0,0,0] op_sel_hi:[1,0,1]
        v_pk_fma_f32 {v(SN_,2)}, {v(TN,2)}, {v(vM,2)}, {v(SN_,2)} op_sel:[0,0,0] op_sel_hi:[1,0,1]
        v_add_f32 v{SP_}, v{SP_}, v{SP_+1}
        v_add_f32 v{SN_}, v{SN_}, v{SN_+1}
        v_mov_b32 v{SP_+1}, v{SP_}
        v_mov_b32 v{SN_+1}, v{SN_}
        s_nop 1
        v_permlane32_swap_b32 v{SP_}, v{SP_+1}
        v_permlane32_swap_b32 v{SN_}, v{SN_+1}
        s_nop 0
        v_add_f32 v{SP_}, v{SP_}, v{SP_+1}
        v_add_f32 v{SN_}, v{SN_}, v{SN_+1}
        v_rcp_f32 v{SP_}, v{SP_}
        v_rcp_f32 v{SN_}, v{SN_}
        s_nop 0
        v_mul_f32 v{SP_+1}, v{vM}, v{SP_}
        v_mul_f32 v{SN_+1}, v{vM}, v{SN_}""")
        for k in range(0, 16, 2):
            sel = "op_sel:[0,0] op_sel_hi:[1,0]" if k < 12 else "op_sel:[0,1] op_sel_hi:[1,1]"
            A(f"v_pk_mul_f32 {v(EP+k,2)}, {v(EP+k,2)}, {v(SP_,2)} {sel}")
            A(f"v_pk_mul_f32 {v(EN+k,2)}, {v(EN+k,2)}, {v(SN_,2)} {sel}")
        for p in range(8):
            A(f"v_cvt_pk_bf16_f32 v{OUT+p}, v{EP+2*p}, v{EP+2*p+1}")
        for p in range(8):
            A(f"v_cvt_pk_bf16_f32 v{OUT+8+p}, v{EN+2*p}, v{EN+2*p+1}")
    EP, EN = 64, 80
    FK = 168
    FK, FQ = 184, 200
    A("s_nop 7")
    softmax(pK, EP, EN, FK)
    ST("smK_done")
    TP_, TN_ = 64, 80
    A("s_nop 1")
    A(f"v_mfma_f32_32x32x16_bf16 {v(TP_,16)}, {v(FK,4)}, {v(vID,4)}, 0")
    A(f"v_mfma_f32_32x32x16_bf16 {v(TN_,16)}, {v(FK+8,4)}, {v(vID,4)}, 0")
    A(f"v_mfma_f32_32x32x16_bf16 {v(TP_,16)}, {v(FK+4,4)}, {v(vID+4,4)}, {v(TP_,16)}")
    A(f"v_mfma_f32_32x32x16_bf16 {v(TN_,16)}, {v(FK+12,4)}, {v(vID+4,4)}, {v(TN_,16)}")
    softmax(pQ, 216, 232, FQ)
    A("s_nop 1")
    for st in range(4):
        A(f"buffer_store_dwordx4 {v(FQ+4*st,4)}, v{vPQ}, s[{SWS}:{SWS+3}], s{sPHQ} offen offset:{1024*st}")
    ST("smQ_done")
    GA = 136
    for p in range(8): A(f"v_cvt_pk_bf16_f32 v{GA+p}, v{TP_+2*p}, v{TP_+2*p+1}")
    for p in range(8): A(f"v_cvt_pk_bf16_f32 v{GA+8+p}, v{TN_+2*p}, v{TN_+2*p+1}")
    KP_, KN_ = 96, 152
    A("s_nop 1")
    A(f"v_mfma_f32_32x32x16_bf16 {v(KP_,16)}, {v(GA,4)}, {v(PKV,4)}, 0")
    A(f"v_mfma_f32_32x32x16_bf16 {v(KN_,16)}, {v(GA+8,4)}, {v(PKV,4)}, 0")
    A(f"v_mfma_f32_32x32x16_bf16 {v(KP_,16)}, {v(GA+4,4)}, {v(PKV+4,4)}, {v(KP_,16)}")
    A(f"v_mfma_f32_32x32x16_bf16 {v(KN_,16)}, {v(GA+12,4)}, {v(PKV+4,4)}, {v(KN_,16)}")
    A("s_nop 7\ns_nop 7\ns_nop 3")
    for sign, R in ((0, KP_), (1, KN_)):
        for j in range(2):
            for q in range(2):
                A(f"ds_write_b128 v{vPW}, {v(R+8*j+4*q,4)} offset:{(2*sign+j)*2304 + q*1152}")
    ST("kv_done")
    l1, l2 = A.label("A1_q"), A.label("A1_r")
    A(f"""s_cmp_lg_u32 s{sW}, 0
    s_cbranch_scc1 {l2}
    s_waitcnt vmcnt(4)
    {l1}:
    v_readfirstlane_b32 s{sT0}, v{vFL}
    s_cmp_lg_u32 s{sT0}, 0
    s_cbranch_scc1 {l2}
    global_load_dword v{vFL}, v{vFA}, s[32:33] offset:64 sc1
    s_waitcnt vmcnt(0)
    s_branch {l1}
    {l2}:
    s_waitcnt lgkmcnt(0)
    s_barrier""")
    ST("bar_done")
    R = 64
    def rdp(i):
        for src in range(4):
            A(f"ds_read_b64 {v(R+8*i+2*src,2)}, v{vPR} offset:{src*PART_W + i*256}")
    for i in range(3): rdp(i)
    for i in range(4):
        A(f"s_waitcnt lgkmcnt({[8,8,4,0][i]})")
        if i == 0: pass
        b = R+8*i
        A(f"""v_pk_add_f32 {v(b,2)}, {v(b,2)}, {v(b+2,2)}
        v_pk_add_f32 {v(b+4,2)}, {v(b+4,2)}, {v(b+6,2)}
        v_pk_add_f32 {v(b,2)}, {v(b,2)}, {v(b+4,2)}
        v_cvt_pk_bf16_f32 v{b}, v{b}, v{b+1}
        buffer_atomic_pk_add_bf16 v{b}, v{vAO}, s[{SWS}:{SWS+3}], 0 offen offset:{256*i}""")
        if i == 0: rdp(3)
    ST("end"); ST("rt1", True)
    ST.dump(2, sW)
    A("s_endpgm")
```

```python
from asmlib import *

STG_W   = 54*272
STG     = 0
KC      = 0
KC_D    = 4*4160
XCH     = 66560
UT      = 8*STG_W
UT_D    = 4608
KP      = UT + 4*UT_D
KP_D    = 3200
B_LDS   = KP + 4*KP_D
WS_YT   = 8 << 20

def cmul(A, out, z, m, conj=False):
    A(f"v_pk_mul_f32 {v(out,2)}, {v(z,2)}, {v(m,2)} op_sel:[0,0] op_sel_hi:[1,0]")
    neg = "neg_hi:[1,0,0]" if conj else "neg_lo:[1,0,0]"
    A(f"v_pk_fma_f32 {v(out,2)}, {v(z,2)}, {v(m,2)}, {v(out,2)} op_sel:[1,1,0] op_sel_hi:[0,1,1] {neg}")

def gen_B(A, sWG=2):
    sG, sD0, sW, sDD, sHALF = 36, 37, 38, 39, 40
    sT0, sT1, sT2 = 41, 42, 43
    SRD_WS = 44
    sLD = 48
    sYT = 50
    EX0 = 52
    sDS = 54
    vLane, vP, vU, vEA, vKW, vSW, vSR = 1, 2, 8, 16, 38, 39, 40
    vKA = 41
    vCA, vCB, vXW, vXR, vYO, vDT = 46, 47, 48, 49, 50, 51
    vT = 52
    vUR = 252
    ST = Stamper(A)
    ST("rt0", True); ST("start")
    A(f"""
    s_sub_u32 s{sT0}, s{sWG}, 128
    s_and_b32 s{sT1}, s{sT0}, 7
    s_mul_i32 s{sT1}, s{sT1}, 14
    s_lshr_b32 s{sT0}, s{sT0}, 3
    s_add_u32 s{sG}, s{sT0}, s{sT1}
    s_lshl_b32 s{sD0}, s{sG}, 2
    v_lshrrev_b32 v{vT}, 6, v0
    v_and_b32 v{vLane}, 63, v0
    s_nop 0
    v_readfirstlane_b32 s{sW}, v{vT}
    s_lshl_b32 s{sT0}, s{sG}, 3
    s_waitcnt lgkmcnt(0)
    s_load_dwordx2 s[{sLD}:{sLD+1}], s[26:27], s{sT0}
    s_load_dwordx2 s[{sDS}:{sDS+1}], s[28:29], s{sT0}
    s_lshr_b32 s{sDD}, s{sW}, 1
    s_and_b32 s{sHALF}, s{sW}, 1
    """)
    A(f"""
    s_add_u32 s{sT0}, s{sD0}, s{sDD}
    s_lshl_b32 s{sT0}, s{sT0}, 9
    s_lshl_b32 s{sT1}, s{sHALF}, 8
    s_add_u32 s{sT0}, s{sT0}, s{sT1}
    v_lshl_add_u32 v{vT}, v{vLane}, 2, s{sT0}
    global_load_dword v{vP+0}, v{vT}, s[14:15]
    global_load_dword v{vP+1}, v{vT}, s[16:17]
    global_load_dword v{vP+2}, v{vT}, s[18:19]
    global_load_dword v{vP+3}, v{vT}, s[20:21]
    global_load_dword v{vP+4}, v{vT}, s[22:23]
    global_load_dword v{vP+5}, v{vT}, s[24:25]
    """)
    A(f"""
    s_movk_i32 s{sT1}, 3584
    s_lshl_b32 s{sT0}, s{sG}, 3
    v_mul_lo_u32 v{vT+1}, v0, s{sT1}
    v_add_u32 v{vT+1}, s{sT0}, v{vT+1}
    global_load_dwordx2 {v(vU,2)}, v{vT+1}, s[12:13]
    global_load_dwordx2 {v(vU+2,2)}, v{vT+1}, s[12:13] offset:896
    global_load_dwordx2 {v(vU+4,2)}, v{vT+1}, s[12:13] offset:1792
    global_load_dwordx2 {v(vU+6,2)}, v{vT+1}, s[12:13] offset:2688
    """)
    srd(A, SRD_WS, 34, 0x10000000)
    ST("loads_issued")
    Z = 60
    A(f"""
    v_mov_b32 v{Z}, 0
    v_mov_b32 v{Z+1}, 0
    v_mov_b32 v{Z+2}, 0
    v_mov_b32 v{Z+3}, 0
    v_lshlrev_b32 v{vT}, 4, v0
    v_add_u32 v{vT}, {KP}, v{vT}
    ds_write_b128 v{vT}, {v(Z,4)}
    v_subrev_u32 v{vT+1}, 288, v0
    v_lshrrev_b32 v{vT+2}, 5, v{vT+1}
    v_and_b32 v{vT+1}, 31, v{vT+1}
    v_mul_u32_u24 v{vT+2}, {UT_D}, v{vT+2}
    v_lshl_add_u32 v{vT+2}, v{vT+1}, 4, v{vT+2}
    v_add_u32 v{vT+2}, {UT}, v{vT+2}
    v_add_u32 v{vT+3}, 8192, v{vT}
    v_cmp_gt_u32 vcc, 288, v0
    s_nop 1
    v_cndmask_b32 v{vT+2}, v{vT+2}, v{vT+3}, vcc
    v_cmp_gt_u32 vcc, 416, v0
    s_nop 1
    v_cndmask_b32 v{vT+2}, v{vT}, v{vT+2}, vcc
    ds_write_b128 v{vT+2}, {v(Z,4)}
    """)
    A(f"""
    s_mul_i32 s{sT0}, s{sW}, {STG_W}
    v_lshl_add_u32 v{vSW}, v{vLane}, 2, s{sT0}
    v_and_b32 v{vT}, 31, v{vLane}
    v_lshrrev_b32 v{vT+1}, 5, v{vLane}
    v_mul_u32_u24 v{vSR}, 272, v{vT}
    v_lshl_add_u32 v{vSR}, v{vT+1}, 4, v{vSR}
    v_add_u32 v{vSR}, s{sT0}, v{vSR}
    s_mul_i32 s{sT1}, s{sDD}, {KP_D}
    s_add_u32 s{sT1}, s{sT1}, {KP+16}
    v_lshlrev_b32 v{vKA}, 5, v{vT}
    v_lshl_add_u32 v{vKA}, v{vT+1}, 4, v{vKA}
    v_add_u32 v{vKA}, s{sT1}, v{vKA}
    v_lshlrev_b32 v{vKA+1}, 4, v{vT}
    v_lshl_add_u32 v{vKA+1}, v{vT+1}, 3, v{vKA+1}
    v_add_u32 v{vKA+1}, s{sT1}, v{vKA+1}
    v_lshlrev_b32 v{vKA+2}, 3, v{vT}
    v_lshl_add_u32 v{vKA+2}, v{vT+1}, 2, v{vKA+2}
    v_add_u32 v{vKA+2}, s{sT1}, v{vKA+2}
    v_lshlrev_b32 v{vKA+3}, 2, v{vT}
    v_lshl_add_u32 v{vKA+3}, v{vT+1}, 7, v{vKA+3}
    v_add_u32 v{vKA+3}, s{sT1}, v{vKA+3}
    v_lshlrev_b32 v{vKA+4}, 2, v{vLane}
    v_add_u32 v{vKA+4}, 2600, v{vKA+4}
    v_mov_b32 v{vT+2}, 2560
    v_cmp_eq_u32 vcc, 0, v{vLane}
    s_nop 1
    v_cndmask_b32 v{vKA+4}, v{vKA+4}, v{vT+2}, vcc
    v_add_u32 v{vKA+4}, s{sT1}, v{vKA+4}
    """)
    A(f"""
    s_lshl_b32 s{sT2}, s{sHALF}, 6
    v_add_u32 v{vT}, s{sT2}, v{vLane}
    s_mul_i32 s{sT0}, s{sDD}, {KC_D}
    v_lshl_add_u32 v{vKW}, v{vT}, 4, s{sT0}
    v_lshlrev_b32 v{vT}, 3, v{vT}
    s_sub_u32 s{sT2}, s{sT1}, {4*0x4280}
    """)
    for it in range(2):
        A(f"v_sub_u32 v{vT+1}, {2047-1024*it}, v{vT}")
        for q in range(0, 11, 2):
            two = q+1 < 11
            A(f"""v_subrev_u32 v{vT+2}, {q}, v{vT+1}
            v_cvt_f32_i32 v{vT+3}, v{vT+2}""")
            if two:
                A(f"""v_subrev_u32 v{vT+4}, {q+1}, v{vT+1}
                v_cvt_f32_i32 v{vT+5}, v{vT+4}
                v_cvt_pk_bf16_f32 v{vT+6}, v{vT+3}, v{vT+5}""")
            else:
                A(f"v_cvt_pk_bf16_f32 v{vT+6}, v{vT+3}, v{vT+3}")
            d0 = vEA + 11*it + q
            A(f"""v_and_b32 v{vT+7}, 0xffff, v{vT+6}
            v_lshl_add_u32 v{d0}, v{vT+7}, 2, s{sT2}""")
            if two:
                A(f"""v_lshrrev_b32 v{vT+7}, 16, v{vT+6}
                v_lshl_add_u32 v{d0+1}, v{vT+7}, 2, s{sT2}""")
            if it == 1:
                A(f"""v_cmp_ge_i32 vcc, 256, v{vT+2}
                v_lshl_add_u32 v{vT+7}, v{vT+2}, 2, s{sT1}
                s_nop 0
                v_cndmask_b32 v{d0}, v{d0}, v{vT+7}, vcc""")
                if two:
                    A(f"""v_cmp_ge_i32 vcc, 256, v{vT+4}
                    v_lshl_add_u32 v{vT+7}, v{vT+4}, 2, s{sT1}
                    s_nop 0
                    v_cndmask_b32 v{d0+1}, v{d0+1}, v{vT+7}, vcc""")
    A(f"""
    v_and_b32 v{vT}, 15, v{vLane}
    v_lshrrev_b32 v{vT+1}, 4, v{vLane}
    v_add_u32 v{vT+2}, 1, v{vT}
    v_and_b32 v{vT+2}, 3, v{vT+2}
    v_sub_u32 v{vT+3}, 15, v{vT}
    v_lshl_add_u32 v{vT+3}, v{vT+1}, 3, v{vT+3}
    v_add_u32 v{vT+3}, v{vT+3}, v{vT+2}
    v_add_u32 v{vT+4}, -4, v{vT+3}
    v_cmp_eq_u32 vcc, 0, v{vT+2}
    v_mul_u32_u24 v{vT+5}, 4160, v{vT+2}
    s_nop 0
    v_cndmask_b32 v{vT+3}, v{vT+4}, v{vT+3}, vcc
    v_lshl_add_u32 v{vCA}, v{vT+3}, 1, v{vT+5}
    s_mul_i32 s{sT0}, s{sDD}, {KC_D}
    s_sub_u32 s{sT1}, 1, s{sHALF}
    s_lshl_b32 s{sT1}, s{sT1}, 8
    s_add_u32 s{sT0}, s{sT0}, s{sT1}
    v_add_u32 v{vCA}, s{sT0}, v{vCA}
    v_lshlrev_b32 v{vCB}, 5, v{vT}
    v_lshl_add_u32 v{vCB}, v{vT+1}, 4, v{vCB}
    s_mul_i32 s{sT0}, s{sDD}, {UT_D}
    s_lshl_b32 s{sT1}, s{sHALF}, 8
    s_sub_u32 s{sT0}, s{sT0}, s{sT1}
    s_add_u32 s{sT0}, s{sT0}, {UT+512-224}
    v_add_u32 v{vCB}, s{sT0}, v{vCB}
    s_lshl_b32 s{sT0}, s{sW}, 12
    s_add_u32 s{sT1}, s{sT0}, {XCH}
    v_lshl_add_u32 v{vXW}, v{vLane}, 4, s{sT1}
    s_xor_b32 s{sT0}, s{sW}, 1
    s_lshl_b32 s{sT0}, s{sT0}, 12
    s_add_u32 s{sT1}, s{sT0}, {XCH}
    v_lshl_add_u32 v{vXR}, v{vLane}, 4, s{sT1}
    s_add_u32 s{sT0}, s{sD0}, s{sDD}
    s_lshl_b32 s{sT0}, s{sT0}, 12
    s_lshl_b32 s{sT1}, s{sHALF}, 11
    s_add_u32 s{sT0}, s{sT0}, s{sT1}
    v_lshl_add_u32 v{vYO}, v{vLane}, 4, s{sT0}
    s_mov_b32 s{sYT}, {WS_YT}
    s_mul_i32 s{sT0}, s{sDD}, {UT_D}
    s_lshl_b32 s{sT1}, s{sHALF}, 11
    s_add_u32 s{sT0}, s{sT0}, s{sT1}
    s_add_u32 s{sT0}, s{sT0}, {UT+512}
    v_and_b32 v{vT+2}, 1, v{vT+1}
    v_lshlrev_b32 v{vT+2}, 9, v{vT+2}
    v_lshl_add_u32 v{vT+2}, v{vT}, 5, v{vT+2}
    v_lshrrev_b32 v{vT+3}, 1, v{vT+1}
    v_lshl_add_u32 v{vT+2}, v{vT+3}, 4, v{vT+2}
    v_add_u32 v{vUR}, s{sT0}, v{vT+2}
    """)
    ST("addr_done")
    A(f"""
    s_waitcnt lgkmcnt(0)
    s_barrier
    s_cmp_ge_u32 s{sDD}, 2
    s_cselect_b32 s{sT0}, s{sLD+1}, s{sLD}
    s_and_b32 s{sT1}, s{sDD}, 1
    s_lshl_b32 s{sT1}, s{sT1}, 4
    s_lshr_b32 s{sT0}, s{sT0}, s{sT1}
    s_lshl_b32 s{sT0}, s{sT0}, 16
    s_cmp_ge_u32 s{sDD}, 2
    s_cselect_b32 s{sDS}, s{sDS+1}, s{sDS}
    s_lshr_b32 s{sDS}, s{sDS}, s{sT1}
    s_lshl_b32 s{sDS}, s{sDS}, 16
    s_mov_b32 s{sDS+1}, s{sDS}
    v_mov_b32 v{vT}, s{sT0}
    s_mov_b32 s{sT1}, 0x3fb8aa3b
    v_mul_f32 v{vT+1}, s{sT1}, v{vT}
    v_rndne_f32 v{vT+1}, v{vT+1}
    v_fma_f32 v{vT+2}, v{vT}, s{sT1}, -v{vT+1}
    v_mov_b32 v{vT+3}, 0x32a57060
    v_fma_f32 v{vT+2}, v{vT}, v{vT+3}, v{vT+2}
    v_exp_f32 v{vT+2}, v{vT+2}
    v_cvt_i32_f32 v{vT+1}, v{vT+1}
    s_nop 0
    v_ldexp_f32 v{vT+2}, v{vT+2}, v{vT+1}
    v_cvt_pk_bf16_f32 v{vT+2}, v{vT+2}, v{vT+2}
    v_lshlrev_b32 v{vDT}, 16, v{vT+2}
    """)
    E1,E2,E3,E4,E6,E8,E256,E512,E768,E1024,QA,QB,TA,TB = [64+2*i for i in range(14)]
    FA, FB, ACC = 96, 128, 160
    LOG2E = 0x3fb8aa3b
    def wrow(row, pair):
        A(f"""v_cvt_pk_bf16_f32 v{vT+8}, v{pair}, v{pair+1}
        ds_write_b32 v{vSW}, v{vT+8} offset:{row*272}""")
    tog = [0]
    def wrow2(row, pair):
        t = vT + 8 + tog[0]; tog[0] = (tog[0]+1) % 4
        A(f"""v_cvt_pk_bf16_f32 v{t}, v{pair}, v{pair+1}
        ds_write_b32 v{vSW}, v{t} offset:{row*272}""")
    def setup(c):
        for k in range(6):
            if c == 0: A(f"v_lshlrev_b32 v{vT+k}, 16, v{vP+k}")
            else:      A(f"v_and_b32 v{vT+k}, 0xffff0000, v{vP+k}")
        A(f"""
        v_mul_f32 v{vT}, v{vDT}, v{vT}
        v_mul_f32 v{vT+1}, v{vDT}, v{vT+1}
        v_mul_f32 v{vT+2}, v{vDT}, v{vT+2}
        v_mul_f32 v{vT+3}, v{vDT}, v{vT+3}
        v_mul_f32 v{vT}, {LOG2E}, v{vT}
        v_mul_f32 v{vT+1}, 0.15915494, v{vT+1}
        """)
        cmul(A, QA, vT+4, vT+2)
        A(f"v_xor_b32 v{QA+1}, 0x80000000, v{QA+1}")
        for (dst, mul) in ((E1, 1.0), (E8, 8.0), (E256, 256.0)):
            if mul == 1.0:
                A(f"""v_exp_f32 v{vT+2}, v{vT}
                v_fract_f32 v{vT+3}, v{vT+1}""")
            else:
                A(f"""v_mul_f32 v{vT+2}, {hex(f2u(mul))}, v{vT}
                v_mul_f32 v{vT+3}, {hex(f2u(mul))}, v{vT+1}
                v_exp_f32 v{vT+2}, v{vT+2}
                v_fract_f32 v{vT+3}, v{vT+3}""")
            A(f"""v_cos_f32 v{dst}, v{vT+3}
            v_sin_f32 v{dst+1}, v{vT+3}
            s_nop 0
            v_mul_f32 v{dst}, v{vT+2}, v{dst}
            v_mul_f32 v{dst+1}, v{vT+2}, v{dst+1}""")
    def rows(c, mf):
        mf = list(mf)
        def slot():
            if mf: A(mf.pop(0))
        if c == 0:
            A(f"""v_mov_b32 v{vT+8}, 0x3f80
            ds_write_b32 v{vSW}, v{vT+8} offset:0""")
        wrow2(1, E1)
        cmul(A, E2, E1, E1); wrow2(2, E2); slot()
        cmul(A, E3, E2, E1); wrow2(3, E3)
        cmul(A, E4, E2, E2); wrow2(4, E4); slot()
        cmul(A, TA, E4, E1); wrow2(5, TA)
        cmul(A, E6, E3, E3); wrow2(6, E6); slot()
        cmul(A, TB, E4, E3); wrow2(7, TB)
        wrow2(8, E256); slot()
        cmul(A, TA, E256, E2); wrow2(9, TA)
        cmul(A, TB, E256, E4); wrow2(12, TB); slot()
        cmul(A, TA, E256, E6); wrow2(13, TA)
        cmul(A, E512, E256, E256); wrow2(10, E512); slot()
        cmul(A, TB, E512, E4); wrow2(14, TB)
        cmul(A, E768, E512, E256); wrow2(11, E768); slot()
        cmul(A, TA, E768, E4); wrow2(15, TA)
        cmul(A, E1024, E512, E512); wrow2(16, E1024); slot()
        cmul(A, TB, E1024, E256); wrow2(20, TB)
        cmul(A, TA, E1024, E512); wrow2(17, TA)
        cmul(A, TB, E1024, E768); wrow2(21, TB)
        cmul(A, TA, E1024, E1024); wrow2(18, TA)
        E16 = E2
        cmul(A, QB, QA, E8, conj=True)
        cmul(A, E16, E8, E8)
        wrow2(22, QA); wrow2(23, QB)
        ca, cb, na, nb = QA, QB, TA, TB
        for j in range(2, 32, 2):
            cmul(A, na, ca, E16, conj=True)
            cmul(A, nb, cb, E16, conj=True)
            wrow2(22+j, na); wrow2(23+j, nb)
            ca, na = na, ca
            cb, nb = nb, cb
        while mf: slot()
    def reads():
        for ks in range(8):
            A(f"ds_read_b128 {v(FA+4*ks,4)}, v{vSR} offset:{32*ks}")
            A(f"ds_read_b128 {v(FB+4*ks,4)}, v{vSR} offset:{22*272+32*ks}")
    def mfmas(first):
        out = []
        for ks in range(8):
            cc = "0" if (first and ks == 0) else v(ACC,16)
            out.append(f"v_mfma_f32_32x32x16_bf16 {v(ACC,16)}, {v(FA+4*ks,4)}, {v(FB+4*ks,4)}, {cc}")
        return out
    ST("dt_done")
    A("s_waitcnt vmcnt(4)")
    ST("params_in")
    setup(0)
    rows(0, [])
    ST("rows0")
    reads()
    setup(1)
    A("s_waitcnt lgkmcnt(0)")
    rows(1, mfmas(True))
    ST("rows1")
    reads()
    A(f"""
    s_waitcnt vmcnt(0)
    s_mov_b32 s{sT0}, 0x05040100
    s_mov_b32 s{sT1}, 0x07060302
    v_lshlrev_b32 v{vT+10}, 3, v0
    v_add_u32 v{vT+10}, {UT+512}, v{vT+10}
    """)
    for dd in range(4):
        sel = sT0 if dd % 2 == 0 else sT1
        r = vU + (dd >> 1)
        t = vT + 2*(dd & 1) if True else 0
        A(f"""v_perm_b32 v{t}, v{r+2}, v{r}, s{sel}
        v_perm_b32 v{t+1}, v{r+6}, v{r+4}, s{sel}
        ds_write_b64 v{vT+10}, {v(t,2)} offset:{dd*UT_D}""")
        if dd == 1: A("s_nop 0")
    A("s_waitcnt lgkmcnt(4)")
    for m in mfmas(False): A(m)
    A("s_nop 7\ns_nop 7\ns_nop 3")
    ST("kmfma")
    for jj in range(4):
        A(f"ds_add_f32 v{vKA}, v{ACC+jj} offset:{4*jj}")
    A(f"""ds_add_f32 v{vKA+1}, v{ACC+4} offset:{4*256}
    ds_add_f32 v{vKA+1}, v{ACC+5} offset:{4*257}
    ds_add_f32 v{vKA+2}, v{ACC+6} offset:{4*384}
    ds_add_f32 v{vKA+2}, v{ACC+7} offset:{4*448}
    ds_add_f32 v{vKA+3}, v{ACC+8} offset:{4*512}
    ds_add_f32 v{vKA+3}, v{ACC+9} offset:{4*576}
    ds_add_f32 v{vKA+4}, v{ACC+10}
    s_waitcnt lgkmcnt(0)
    s_barrier""")
    ST("kadd_bar")
    EV = 64
    PK = 96
    for it in range(2):
        for q in range(11):
            A(f"ds_read_b32 v{EV+11*it+q}, v{vEA+11*it+q}")
        if it == 0:
            pass
    A(f"""
    v_and_b32 v{vT}, 1, v{vLane}
    v_bfe_u32 v{vT+1}, v{vLane}, 1, 4
    v_mul_u32_u24 v{vT+1}, 4160, v{vT+1}
    v_lshl_add_u32 v{vT+1}, v{vT}, 4, v{vT+1}
    v_mov_b32 v{Z}, 0
    v_mov_b32 v{Z+1}, 0
    v_mov_b32 v{Z+2}, 0
    v_mov_b32 v{Z+3}, 0
    ds_write_b128 v{vT+1}, {v(Z,4)} offset:4096
    """)
    for it in range(2):
        A(f"s_waitcnt lgkmcnt({12 if it == 0 else 5})")
        e = EV + 11*it
        p = PK + 16*it
        for (si, q0) in ((0, 0), (1, 3), (2, 2), (3, 1)):
            for k in range(4):
                A(f"v_cvt_pk_bf16_f32 v{p+4*si+k}, v{e+q0+2*k}, v{e+q0+2*k+1}")
            A(f"ds_write_b128 v{vKW}, {v(p+4*si,4)} offset:{si*4160+2048*it}")
    A("s_waitcnt lgkmcnt(0)\ns_barrier")
    ST("expand_bar")
    CA = [64, 128]; CB = [96, 160]; CACC = 192
    PP, PU, PT = 224, 240, 248
    def cread(buf, rp):
        out = []
        for q in range(8):
            out.append(f"ds_read_b128 {v(CB[buf]+4*q,4)}, v{vCB} offset:{512*q+32*(7-rp)}")
        for p in range(8):
            off = 32*(119-rp-16*p)
            out.append(f"ds_read_b64 {v(CA[buf]+4*p,2)}, v{vCA} offset:{off}")
            out.append(f"ds_read_b64 {v(CA[buf]+4*p+2,2)}, v{vCA} offset:{off+8}")
        return out
    for r in cread(0, 1): A(r)
    for ri, rp in enumerate((1, 3, 5, 7)):
        buf = ri & 1
        nxt = cread(buf ^ 1, rp+2) if ri < 3 else []
        if ri == 2:
            nxt += [f"ds_read_b128 {v(PU+4*jp,4)}, v{vUR} offset:{1024*jp}" for jp in range(2)]
        if ri == 3:
            for k in range(8):
                t2 = PT + 2*(k & 1)
                nxt += [f"v_lshlrev_b32 v{t2}, 16, v{PU+k}\nv_and_b32 v{t2+1}, 0xffff0000, v{PU+k}",
                        f"v_pk_mul_f32 {v(t2,2)}, {v(t2,2)}, s[{sDS}:{sDS+1}]",
                        f"v_cvt_pk_bf16_f32 v{t2}, v{t2}, v{t2+1}",
                        f"v_lshlrev_b32 v{PP+2*k}, 16, v{t2}\nv_and_b32 v{PP+2*k+1}, 0xffff0000, v{t2}"]
        A("s_waitcnt lgkmcnt(0)")
        for p in range(8):
            for q in range(7-p, -1, -1):
                J = p+q
                cc = "0" if (ri == 0 and p == 0) else v(CACC+4*J,4)
                A(f"v_mfma_f32_16x16x32_bf16 {v(CACC+4*J,4)}, {v(CA[buf]+4*p,4)}, {v(CB[buf]+4*q,4)}, {cc}")
                if nxt: A(nxt.pop(0))
    ST("conv_done")
    lab1, lab2 = A.label("B_h1"), A.label("B_hx")
    A(f"""s_nop 7
    s_nop 1
    s_cmp_eq_u32 s{sHALF}, 1
    s_cbranch_scc1 {lab1}""")
    for j in range(4):
        A(f"ds_write_b128 v{vXW}, {v(CACC+16+4*j,4)} offset:{1024*j}")
    A(f"s_branch {lab2}\n{lab1}:")
    for j in range(4):
        A(f"ds_write_b128 v{vXW}, {v(CACC+4*j,4)} offset:{1024*j}")
    for j in range(16):
        A(f"v_mov_b32 v{CACC+j}, v{CACC+16+j}")
    A(f"""{lab2}:
    s_waitcnt lgkmcnt(0)
    s_barrier""")
    ST("xch_bar")
    X = 64
    for j in range(4):
        A(f"ds_read_b128 {v(X+4*j,4)}, v{vXR} offset:{1024*j}")
    for jp in range(2):
        A(f"s_waitcnt lgkmcnt({2 if jp == 0 else 0})")
        for k in range(8):
            A(f"v_add_f32 v{X+8*jp+k}, v{X+8*jp+k}, v{CACC+8*jp+k}")
        T = 96 + 4*jp
        A(f"""v_cvt_pk_bf16_f32 v{T}, v{X+8*jp}, v{X+8*jp+1}
        v_cvt_pk_bf16_f32 v{T+1}, v{X+8*jp+2}, v{X+8*jp+3}
        v_cvt_pk_bf16_f32 v{T+2}, v{X+8*jp+4}, v{X+8*jp+5}
        v_cvt_pk_bf16_f32 v{T+3}, v{X+8*jp+6}, v{X+8*jp+7}
        s_nop 1
        v_permlane16_swap_b32 v{T}, v{T+2}
        v_permlane16_swap_b32 v{T+1}, v{T+3}
        s_nop 1""")
        for k in range(4):
            t2 = PT + 2*(k & 1)
            A(f"""v_lshlrev_b32 v{t2}, 16, v{T+k}
            v_and_b32 v{t2+1}, 0xffff0000, v{T+k}
            v_pk_add_f32 {v(t2,2)}, {v(t2,2)}, {v(PP+8*jp+2*k,2)}
            v_cvt_pk_bf16_f32 v{T+k}, v{t2}, v{t2+1}""")
        A(f"""buffer_store_dwordx4 {v(T,4)}, v{vYO}, s[{SRD_WS}:{SRD_WS+3}], s{sYT} offen offset:{1024*jp}""")
    ST("end"); ST("rt1", True)
    ST.dump(2, sW)
    A("s_endpgm")

import struct
def f2u(x):
    return struct.unpack("<I", struct.pack("<f", x))[0]
```

```python
from asmlib import *
WS_ACC = 0
WS_PHQ = 1 << 20
WS_WOF = 6 << 20
WS_YT = 8 << 20
L2_LDS = 32768 + 28672
VGPRS = 512
ACCOFF = 256
OX = 0
YL = 32768


def gen_W(A):
    sH, sW, sT0, sT1 = 36, 38, 41, 42
    SWO, SWS = 44, 48
    vL, vO, vD, vM = 1, 2, 3, 4
    R = 16
    lab = A.label("W_end")
    A(f"""
    s_sub_u32 s{sH}, s2, 240
    v_lshrrev_b32 v5, 6, v0
    v_and_b32 v{vL}, 63, v0
    s_nop 0
    v_readfirstlane_b32 s{sW}, v5
    v_lshrrev_b32 v5, 5, v{vL}
    v_and_b32 v6, 31, v{vL}
    s_mul_i32 s{sT0}, s{sH}, {28*896}
    s_lshl_b32 s{sT1}, s{sW}, 7
    s_add_u32 s{sT0}, s{sT0}, s{sT1}
    v_mul_u32_u24 v{vO}, {4*896}, v5
    v_lshl_add_u32 v{vO}, v6, 1, v{vO}
    v_add_u32 v{vO}, s{sT0}, v{vO}
    v_lshl_add_u32 v{vM}, v6, 1, s{sT0}
    s_lshl_b32 s{sT0}, s{sW}, 16
    s_lshl_b32 s{sT1}, s{sH}, 11
    s_add_u32 s{sT0}, s{sT0}, s{sT1}
    s_add_u32 s{sT0}, s{sT0}, {WS_WOF}
    v_lshl_add_u32 v{vD}, v{vL}, 4, s{sT0}
    v_cmp_gt_u32 vcc, 32, v{vL}
    s_cmp_ge_u32 s{sW}, 7
    s_cbranch_scc1 {lab}
    s_waitcnt lgkmcnt(0)
    """)
    srd(A, SWO, 10, 448*896)
    srd(A, SWS, 34, 0x10000000)
    for c in range(2):
        for j in range(2):
            for e in range(8):
                row = 16*j + 8*(e >> 2) + (e & 3)
                A(f"""s_mov_b32 s{sT0}, {row*896}
                buffer_load_ushort v{R+16*c+8*j+e}, v{vM if (j == 1 and e >= 4) else vO}, s[{SWO}:{SWO+3}], s{sT0} offen offset:{64*c}""")
    for c in range(2):
        for j in range(2):
            A(f"s_waitcnt vmcnt({24-16*c-8*j})")
            b = R+16*c+8*j
            P = 64 + 4*(2*c+j)
            for k in range(4):
                A(f"v_lshl_or_b32 v{P+k}, v{b+2*k+1}, 16, v{b+2*k}")
            if j == 1:
                A(f"""v_cndmask_b32 v{P+2}, 0, v{P+2}, vcc
                v_cndmask_b32 v{P+3}, 0, v{P+3}, vcc""")
    for c in range(2):
        for j in range(2):
            P = 64 + 4*(2*c+j)
            A(f"""s_mov_b32 s{sT0}, {c*32768 + j*1024}
            buffer_store_dwordx4 {v(P,4)}, v{vD}, s[{SWS}:{SWS+3}], s{sT0} offen""")
    A(f"{lab}:\ns_endpgm")


def gen_L2(A, roles):
    sTT, sCT, sW, sCTI, sRole = 36, 37, 38, 39, 40
    sT0, sT1, sT2 = 41, 42, 43
    SWS, SOUT = 44, 48
    MHI = 52
    vL, vQ, vK, vWf, vOW, vOR, vOut, vY, vYW, vYR = 1, 2, 3, 4, 5, 6, 7, 8, 9, 10
    vT = 12
    PQ, KV, NUM = 64, 128, 192
    ST = Stamper(A)
    ST("rt0", True); ST("start")
    A(f"""
    s_and_b32 s{sT0}, s2, 7
    s_lshl_b32 s{sT0}, s{sT0}, 3
    s_bfe_u32 s{sT1}, s2, 0x30003
    s_add_u32 s{sTT}, s{sT0}, s{sT1}
    s_lshr_b32 s{sCT}, s2, 6
    v_lshrrev_b32 v{vT}, 6, v0
    v_and_b32 v{vL}, 63, v0
    s_nop 0
    v_readfirstlane_b32 s{sW}, v{vT}
    v_lshlrev_b32 v{vT+1}, 4, v{vL}
    s_lshl_b32 s{sT0}, s{sTT}, 16
    s_lshl_b32 s{sT1}, s{sW}, 14
    s_add_u32 s{sT0}, s{sT0}, s{sT1}
    s_add_u32 s{sT0}, s{sT0}, {WS_PHQ}
    v_add_u32 v{vQ}, s{sT0}, v{vT+1}
    v_add_u32 v{vK}, s{sT1}, v{vT+1}
    s_lshl_b32 s{sCTI}, s{sCT}, 2
    s_add_u32 s{sCTI}, s{sCTI}, s{sW}
    s_lshl_b32 s{sT0}, s{sCTI}, 15
    s_add_u32 s{sT0}, s{sT0}, {WS_WOF}
    v_add_u32 v{vWf}, s{sT0}, v{vT+1}
    s_waitcnt lgkmcnt(0)
    """)
    srd(A, SWS, 34, 0x10000000)
    for hh in range(4):
        for st in range(4):
            k = 4*hh + st
            A(f"""s_mov_b32 s{sT0}, {k*1024}
            buffer_load_dwordx4 {v(KV+4*k,4)}, v{vK}, s[{SWS}:{SWS+3}], s{sT0} offen
            buffer_load_dwordx4 {v(PQ+4*k,4)}, v{vQ}, s[{SWS}:{SWS+3}], s{sT0} offen""")
    labB, labJ = A.label("L2_ldB"), A.label("L2_ldJ")
    A(f"""s_cmp_ge_u32 s{sCTI}, 14
    s_cbranch_scc1 {labB}""")
    for k in range(32):
        A(f"""s_mov_b32 s{sT0}, {k*1024}
        buffer_load_dwordx4 {a(4*k,4)}, v{vWf}, s[{SWS}:{SWS+3}], s{sT0} offen""")
    A(f"s_branch {labJ}\n{labB}:")
    A(f"""
    s_lshr_b32 s{sT0}, s{sTT}, 3
    s_lshr_b32 s{sT1}, s{sT0}, 1
    s_lshl_b32 s{sT1}, s{sT1}, 10
    s_and_b32 s{sT0}, s{sT0}, 1
    s_lshl_b32 s{sT0}, s{sT0}, 8
    s_add_u32 s{sT1}, s{sT1}, s{sT0}
    s_and_b32 s{sT0}, s{sTT}, 7
    s_lshl_b32 s{sT0}, s{sT0}, 5
    s_add_u32 s{sT1}, s{sT1}, s{sT0}
    s_sub_u32 s{sT0}, s{sW}, 2
    s_mul_i32 s{sT0}, s{sT0}, {224*4096}
    s_add_u32 s{sT1}, s{sT1}, s{sT0}
    s_add_u32 s{sT1}, s{sT1}, {WS_YT}
    v_lshrrev_b32 v{vT}, 2, v{vL}
    v_lshlrev_b32 v{vT}, 12, v{vT}
    v_and_b32 v{vT+1}, 1, v{vL}
    v_lshl_add_u32 v{vT}, v{vT+1}, 9, v{vT}
    v_bfe_u32 v{vT+1}, v{vL}, 1, 1
    v_lshl_add_u32 v{vT}, v{vT+1}, 4, v{vT}
    v_add_u32 v{vY}, s{sT1}, v{vT}
    """)
    for k in range(14):
        A(f"""s_mov_b32 s{sT0}, {k*16*4096}
        buffer_load_dwordx4 {a(4*k,4)}, v{vY}, s[{SWS}:{SWS+3}], s{sT0} offen""")
    A(f"{labJ}:")
    ST("loads_issued")
    A(f"""
    v_lshlrev_b32 v{vT+1}, 4, v{vL}
    s_lshl_b32 s{sT0}, s{sW}, 13
    v_add_u32 v{vOW}, s{sT0}, v{vT+1}
    v_mov_b32 v{vOR}, v{vT+1}
    v_and_b32 v{vT}, 31, v{vL}
    v_lshrrev_b32 v{vT+2}, 5, v{vL}
    s_lshl_b32 s{sT0}, s{sTT}, 5
    v_add_u32 v{vT}, s{sT0}, v{vT}
    v_mul_u32_u24 v{vOut}, 1792, v{vT}
    v_lshl_add_u32 v{vOut}, v{vT+2}, 4, v{vOut}
    s_mov_b32 s{MHI}, 0
    s_mov_b32 s{MHI+1}, -1
    """)
    srd(A, SOUT, 30, 2048*1792)
    def phase1(extra):
        for hh in range(4):
            acc = NUM + 16*hh
            pend = extra + 8*(3-hh)
            A(f"s_waitcnt vmcnt({min(pend, 63)})")
            for st in range(4):
                k = 4*hh + st
                cc = "0" if st == 0 else v(acc,16)
                A(f"v_mfma_f32_32x32x16_bf16 {v(acc,16)}, {v(KV+4*k,4)}, {v(PQ+4*k,4)}, {cc}")
        for hh in range(4):
            acc = NUM + 16*hh
            if hh == 3: A("s_nop 7\ns_nop 7")
            d0, d1 = vT, vT+1
            A(f"""v_mov_b32 v{d0}, v{acc+12}
            v_mov_b32 v{d1}, v{acc+12}
            s_nop 1
            v_permlane32_swap_b32 v{d0}, v{d1}
            s_nop 1
            v_add_f32 v{d1}, 0x358637bd, v{d1}
            v_rcp_f32 v{vT+2}, v{d1}
            s_nop 0
            v_mov_b32 v{vT+3}, v{vT+2}""")
            P = vT + 4 + 8*(hh & 1)
            for q in range(8):
                A(f"v_pk_mul_f32 {v(acc+2*q,2)}, {v(acc+2*q,2)}, {v(vT+2,2)}")
            for q in range(8):
                A(f"v_cvt_pk_bf16_f32 v{P+q}, v{acc+2*q}, v{acc+2*q+1}")
            A(f"""v_cndmask_b32 v{P+6}, v{P+6}, 0, s[{MHI}:{MHI+1}]
            v_cndmask_b32 v{P+7}, v{P+7}, 0, s[{MHI}:{MHI+1}]
            ds_write_b128 v{vOW}, {v(P,4)} offset:{2048*hh}
            ds_write_b128 v{vOW}, {v(P+4,4)} offset:{2048*hh+1024}""")
    labP, labQ, labE = A.label("L2_pB"), A.label("L2_p2"), A.label("L2_e")
    A(f"""s_cmp_ge_u32 s{sCTI}, 14
    s_cbranch_scc1 {labP}""")
    phase1(32)
    ST("p1_done")
    A("s_waitcnt lgkmcnt(0)\ns_barrier")
    ST("bar")
    OF = 64; D = 192
    for k in range(32):
        A(f"ds_read_b128 {v(OF+4*k,4)}, v{vOR} offset:{1024*k}")
        if k == 14: pass
    A("s_waitcnt vmcnt(0)")
    ST("wo_in")
    for k in range(32):
        if k % 4 == 0:
            A(f"s_waitcnt lgkmcnt({min(15, 28-k)})")
        cc = "0" if k == 0 else v(D,16)
        A(f"v_mfma_f32_32x32x16_bf16 {v(D,16)}, {a(4*k,4)}, {v(OF+4*k,4)}, {cc}")
    A(f"""s_lshl_b32 s{sT0}, s{sCTI}, 6
    s_nop 7
    s_nop 7""")
    T = 16
    for i in range(4):
        A(f"""v_cvt_pk_bf16_f32 v{T+2*i}, v{D+4*i}, v{D+4*i+1}
        v_cvt_pk_bf16_f32 v{T+2*i+1}, v{D+4*i+2}, v{D+4*i+3}""")
    A("s_nop 1")
    for p in range(2):
        A(f"""v_permlane32_swap_b32 v{T+4*p}, v{T+4*p+2}
        v_permlane32_swap_b32 v{T+4*p+1}, v{T+4*p+3}""")
    A("s_nop 1")
    for p in range(2):
        A(f"buffer_store_dwordx4 {v(T+4*p,4)}, v{vOut}, s[{SOUT}:{SOUT+3}], s{sT0} offen offset:{32*p}")
    A(f"s_branch {labE}\n{labP}:")
    phase1(14)
    A(f"""s_waitcnt lgkmcnt(0)
    s_barrier
    s_sub_u32 s{sT1}, s{sW}, 2
    s_mul_i32 s{sT0}, s{sT1}, {224*64}
    s_add_u32 s{sT0}, s{sT0}, {YL}
    v_lshl_add_u32 v{vYW}, v{vL}, 4, s{sT0}
    v_lshrrev_b32 v{vT}, 4, v{vL}
    v_and_b32 v{vT+1}, 1, v{vT}
    v_lshrrev_b32 v{vT}, 1, v{vT}
    v_bfe_u32 v{vT+2}, v{vL}, 2, 2
    v_lshl_add_u32 v{vT+2}, v{vT}, 3, v{vT+2}
    v_lshlrev_b32 v{vT+2}, 6, v{vT+2}
    v_lshl_add_u32 v{vT+2}, v{vT+1}, 5, v{vT+2}
    v_and_b32 v{vT+3}, 3, v{vL}
    v_lshl_add_u32 v{vT+2}, v{vT+3}, 3, v{vT+2}
    v_add_u32 v{vYR}, s{sT0}, v{vT+2}
    v_and_b32 v{vT+2}, 15, v{vL}
    v_lshl_add_u32 v{vT+2}, v{vT+1}, 4, v{vT+2}
    s_lshl_b32 s{sT0}, s{sTT}, 5
    v_add_u32 v{vT+2}, s{sT0}, v{vT+2}
    v_mul_u32_u24 v{vOut}, 1792, v{vT+2}
    v_lshl_add_u32 v{vOut}, v{vT}, 4, v{vOut}
    s_mul_i32 s{sT0}, s{sT1}, 448
    s_add_u32 s{sT0}, s{sT0}, 896
    s_waitcnt vmcnt(0)
    """)
    for k in range(14):
        A(f"ds_write_b128 v{vYW}, {a(4*k,4)} offset:{1024*k}")
    A("s_waitcnt lgkmcnt(0)")
    for k in range(14):
        A(f"""ds_read_b64_tr_b16 {v(64+4*k,2)}, v{vYR} offset:{1024*k}
        ds_read_b64_tr_b16 {v(64+4*k+2,2)}, v{vYR} offset:{1024*k+256}""")
    for k in range(14):
        A(f"""s_waitcnt lgkmcnt({min(15, 26-2*k)})
        buffer_store_dwordx4 {v(64+4*k,4)}, v{vOut}, s[{SOUT}:{SOUT+3}], s{sT0} offen offset:{32*k}""")
    A(f"{labE}:")
    ST("end"); ST("rt1", True)
    ST.dump(2, sW, kern=1)
```

```python
import sys
from asmlib import *
import genB
NAME = "concat_heads__linear_kernel_hedgehog__ssm_conv_s4__prompt"

def prologue(A, nwg):
    A(f"""
    s_load_dwordx16 s[4:19], s[0:1], 0
    s_load_dwordx16 s[20:35], s[0:1], 64
    s_cmp_ge_u32 s2, {nwg}
    s_cbranch_scc1 {{END}}
    """)

def build_text(roles, out):
    hdr = open("cdna_kernels/" + NAME + ".s.ref").read().split("\n")
    top = []
    for ln in hdr:
        if ln.startswith("; @launch"): break
        top.append(ln)
    t = "\n".join(top) + "\n"
    kernels = []
    if "L1" in roles: kernels.append(("l1_kernel", 256, 512, 163840))
    if "L2" in roles: kernels.append(("l2_kernel", 256, 256, None))
    body = ""
    desc = ""
    for (k, g, b, lds) in kernels:
        A = Asm()
        if k == "l1_kernel":
            A(f"""
            s_load_dwordx16 s[4:19], s[0:1], 0
            s_load_dwordx16 s[20:35], s[0:1], 64
            s_cmp_ge_u32 s2, 256
            s_cbranch_scc1 L1_END
            s_cmp_ge_u32 s2, 240
            s_cbranch_scc1 L1_W
            s_cmp_ge_u32 s2, 128
            s_cbranch_scc1 L1_B
            """)
            if "A1" in roles["L1"]:
                import genA1
                genA1.gen_A1(A)
            else:
                A("s_endpgm")
            A("L1_B:")
            if "B" in roles["L1"]:
                genB.gen_B(A)
            else:
                A("s_endpgm")
            A("L1_W:")
            if "W" in roles["L1"]:
                import genL2
                genL2.gen_W(A)
            A("L1_END:\ns_endpgm")
            vg = 256; acc = 256
        else:
            import genL2
            lds = genL2.L2_LDS
            A(f"""
            s_load_dwordx16 s[4:19], s[0:1], 0
            s_load_dwordx16 s[20:35], s[0:1], 64
            s_cmp_ge_u32 s2, 256
            s_cbranch_scc1 L2_END
            """)
            genL2.gen_L2(A, roles["L2"])
            A("L2_END:\ns_endpgm")
            vg = genL2.VGPRS; acc = genL2.ACCOFF
        t += f"; @launch kernel={k} grid=({g},1,1) block=({b},1,1) lds={lds}\n"
        body += kernel_head(k) + A.text()
        desc += ".p2align 6\n" + kernel_desc(k, vg, 102, acc)
    t += '.amdgcn_target "amdgcn-amd-amdhsa--gfx950"\n' + body + '.section .rodata,"a"\n' + desc
    open(out, "w").write(t)

if __name__ == "__main__":
    which = sys.argv[1]
    if which == "B":
        build_text({"L1": "B"}, "t_B.s")
    elif which == "A1":
        build_text({"L1": "A1"}, "t_A1.s")
    elif which == "L1":
        build_text({"L1": "A1 B"}, "t_L1.s")
    elif which == "all":
        build_text({"L1": "A1 B W", "L2": "AB"}, sys.argv[2] if len(sys.argv) > 2 else "cdna_kernels/" + NAME + ".s")
```

```python
from asmlib import *
SLOT = 40960
WS_PHQ = 1 << 20
PART_W = 9216
L2E = 0x3fb8aa3b

def gen_A1(A):
    sRT, sHP, sW, sRG, sHH, sH = 36, 37, 38, 39, 40, 41
    sT0, sT1, sT2 = 42, 43, 52
    SX, SW_, SP, SWS = 44, 48, 56, 60
    sXM, sWM, sFirst, sPHQ = 53, 54, 55, 64
    sROT, sXS, sWS = 65, 98, 99
    vLane = 1
    vXO0, vXO1, vWO = 2, 3, 4
    vXR, vWR = 5, 9
    vXC, vWC = 10, 14
    vT = 16
    vWT = 32
    vWP = 48
    vID = 56
    aK, aQ, aV = 64, 80, 96
    FR = 112
    vTK, vFL, vPW, vPR, vPQ, vAO, vFA = 176, 177, 178, 179, 180, 181, 182
    vGA0, vGA1 = 250, 251
    ST = Stamper(A)
    ST("rt0", True); ST("start")
    A(f"""
    s_and_b32 s{sT0}, s2, 3
    s_lshl_b32 s{sT0}, s{sT0}, 2
    s_bfe_u32 s{sT1}, s2, 0x20003
    s_add_u32 s{sRT}, s{sT0}, s{sT1}
    s_bfe_u32 s{sT0}, s2, 0x10002
    s_lshl_b32 s{sT0}, s{sT0}, 2
    s_bfe_u32 s{sT2}, s2, 0x20005
    s_add_u32 s{sHP}, s{sT0}, s{sT2}
    s_add_u32 s{sROT}, s{sT1}, s{sT2}
    s_lshl_b32 s{sROT}, s{sROT}, 1
    s_cmp_ge_u32 s{sROT}, 7
    s_cselect_b32 s{sT0}, 7, 0
    s_sub_u32 s{sROT}, s{sROT}, s{sT0}
    v_lshrrev_b32 v{vT}, 6, v0
    v_and_b32 v{vLane}, 63, v0
    s_nop 0
    v_readfirstlane_b32 s{sW}, v{vT}
    s_mov_b32 s{sFirst}, 0
    s_and_b32 s{sRG}, s{sW}, 3
    s_lshr_b32 s{sHH}, s{sW}, 2
    s_lshl_b32 s{sH}, s{sHP}, 1
    s_add_u32 s{sH}, s{sH}, s{sHH}
    s_lshl_b32 s{sXM}, s{sW}, 11
    s_lshl_b32 s{sWM}, s{sW}, 10
    s_add_u32 s{sWM}, s{sWM}, 16384
    """)
    A(f"""
    v_lshrrev_b32 v{vT}, 3, v{vLane}
    v_and_b32 v{vT+1}, 7, v{vLane}
    v_lshrrev_b32 v{vT+2}, 4, v{vLane}
    s_lshl_b32 s{sT0}, s{sRT}, 7
    s_lshl_b32 s{sT1}, s{sW}, 4
    s_add_u32 s{sT0}, s{sT0}, s{sT1}
    v_add_u32 v{vT+3}, s{sT0}, v{vT}
    v_mul_u32_u24 v{vT+3}, 896, v{vT+3}
    v_xor_b32 v{vT+4}, v{vT+1}, v{vT+2}
    v_lshl_add_u32 v{vXO0}, v{vT+4}, 4, v{vT+3}
    v_xor_b32 v{vT+4}, 4, v{vT+4}
    v_lshl_add_u32 v{vXO1}, v{vT+4}, 4, v{vT+3}
    v_add_u32 v{vXO1}, {8*896}, v{vXO1}
    s_lshl_b32 s{sT1}, s{sW}, 3
    v_add_u32 v{vT+3}, s{sT1}, v{vT}
    v_mul_u32_u24 v{vT+3}, 2688, v{vT+3}
    v_and_b32 v{vT+4}, 1, v{vT+2}
    v_lshlrev_b32 v{vT+4}, 2, v{vT+4}
    v_xor_b32 v{vT+4}, v{vT+4}, v{vT+1}
    v_lshl_add_u32 v{vWO}, v{vT+4}, 4, v{vT+3}
    s_mul_i32 s{sT0}, s{sHP}, 112
    v_add_u32 v{vWO}, s{sT0}, v{vWO}
    s_waitcnt lgkmcnt(0)
    """)
    srd(A, SX, 4, 2048*896)
    srd(A, SW_, 6, 448*2688)
    srd(A, SP, 8, 16*1568)
    srd(A, SWS, 34, 0x10000000)
    lab = A.label("A1_tk")
    A(f"""
    s_cmp_lg_u32 s{sW}, 0
    s_cbranch_scc1 {lab}
    s_lshl_b32 s{sT0}, s{sHP}, 2
    v_mov_b32 v{vT+5}, s{sT0}
    v_mov_b32 v{vT+6}, 1
    s_mov_b64 exec, 1
    global_atomic_add v{vTK}, v{vT+5}, v{vT+6}, s[32:33] sc0
    s_mov_b64 exec, -1
    {lab}:
    """)
    def dma_pre(st):
        A(f"""s_add_u32 s{sXS}, s{sROT}, {st}
        s_cmp_ge_u32 s{sXS}, 7
        s_cselect_b32 s{sWS}, 7, 0
        s_sub_u32 s{sXS}, s{sXS}, s{sWS}
        s_mul_i32 s{sWS}, s{sXS}, {64*2688}
        s_lshl_b32 s{sXS}, s{sXS}, 7""")
    def dma_one(st, i):
        sl = (st % 4)*SLOT
        if i < 2:
            return f"""s_add_u32 m0, s{sXM}, {sl + 1024*i}
            s_nop 0
            buffer_load_dwordx4 v{(vXO0, vXO1)[i]}, s[{SX}:{SX+3}], s{sXS} offen lds"""
        t = i-2
        return f"""s_add_u32 m0, s{sWM}, {sl + 8192*t}
        s_add_u32 s{sT2}, s{sWS}, {t*896}
        buffer_load_dwordx4 v{vWO}, s[{SW_}:{SW_+3}], s{sT2} offen lds"""
    def dma(st):
        dma_pre(st)
        for i in range(5): A(dma_one(st, i))
    ST("pre_dma")
    dma(0)
    ST("dma_issued")
    A(f"""
    v_and_b32 v{vT}, 31, v{vLane}
    v_lshrrev_b32 v{vT+1}, 5, v{vLane}
    v_add_u32 v{vT+2}, -4, v{vT}
    v_cmp_gt_u32 vcc, 28, v{vT}
    s_mul_i32 s{sT0}, s{sH}, 1568
    v_mul_u32_u24 v{vT+3}, 224, v{vT+1}
    v_cndmask_b32 v{vT+2}, v{vT+2}, v{vT}, vcc
    v_lshl_add_u32 v{vT+2}, v{vT+2}, 1, v{vT+3}
    v_add_u32 v{vGA0}, s{sT0}, v{vT+2}
    v_lshlrev_b32 v{vT+4}, 20, v{vT+1}
    v_add_u32 v{vGA1}, v{vT+4}, v{vGA0}
    """)
    def wphi_loads():
        for j in range(2):
            for e in range(8):
                d = 16*j + 8*(e >> 2) + (e & 3)
                ad = vGA1 if (j == 1 and e >= 4) else vGA0
                A(f"buffer_load_ushort v{vWT+8*j+e}, v{ad}, s[{SP}:{SP+3}], 0 offen offset:{d*56}")
    A(f"""
    v_bfe_u32 v{vT+2}, v{vT}, 1, 3
    v_xor_b32 v{vT+2}, v{vT+2}, v{vT+1}
    s_lshl_b32 s{sT0}, s{sRG}, 12
    v_lshlrev_b32 v{vT+3}, 7, v{vT}
    v_add_u32 v{vT+3}, s{sT0}, v{vT+3}
    """)
    for j in range(4):
        A(f"""v_xor_b32 v{vT+4}, {2*j}, v{vT+2}
        v_lshl_add_u32 v{vXR+j}, v{vT+4}, 4, v{vT+3}""")
    A(f"""
    v_bfe_u32 v{vT+2}, v{vLane}, 2, 2
    v_and_b32 v{vT+3}, 3, v{vLane}
    v_bfe_u32 v{vT+4}, v{vLane}, 4, 1
    v_lshlrev_b32 v{vT+3}, 3, v{vT+3}
    v_lshl_add_u32 v{vT+3}, v{vT+4}, 5, v{vT+3}
    s_mul_i32 s{sT0}, s{sHH}, 56
    v_add_u32 v{vT+3}, s{sT0}, v{vT+3}
    v_lshrrev_b32 v{vT+4}, 1, v{vT+2}
    v_lshlrev_b32 v{vT+4}, 6, v{vT+4}
    v_xor_b32 v{vT+3}, v{vT+3}, v{vT+4}
    v_lshl_add_u32 v{vT+3}, v{vT+2}, 7, v{vT+3}
    v_lshl_add_u32 v{vWR}, v{vT+1}, 10, v{vT+3}
    v_add_u32 v{vWR}, 16384, v{vWR}
    """)
    A(f"""
    v_lshlrev_b32 v{vT+2}, 2, v{vT+1}
    v_sub_u32 v{vT+2}, v{vT}, v{vT+2}
    v_mov_b32 v{vT+5}, 0x3f80
    v_mov_b32 v{vT+6}, 0x3f800000
    """)
    for j in range(2):
        for p in range(4):
            e0 = 2*p
            f0 = 16*j + 8*(e0 >> 2) + (e0 & 3)
            A(f"""v_cmp_eq_u32 vcc, {f0}, v{vT+2}
            v_mov_b32 v{vID+4*j+p}, 0
            s_nop 0
            v_cndmask_b32 v{vID+4*j+p}, v{vID+4*j+p}, v{vT+5}, vcc
            v_cmp_eq_u32 vcc, {f0+1}, v{vT+2}
            s_nop 1
            v_cndmask_b32 v{vID+4*j+p}, v{vID+4*j+p}, v{vT+6}, vcc""")
    A(f"""
    s_mul_i32 s{sT0}, s{sW}, {PART_W}
    v_lshl_add_u32 v{vPW}, v{vLane}, 4, s{sT0}
    s_mul_i32 s{sT0}, s{sHH}, {4*PART_W}
    s_mul_i32 s{sT1}, s{sRG}, 2304
    s_add_u32 s{sT0}, s{sT0}, s{sT1}
    v_lshrrev_b32 v{vT+2}, 2, v{vLane}
    v_bfe_u32 v{vT+3}, v{vLane}, 1, 1
    v_and_b32 v{vT+4}, 1, v{vLane}
    v_mul_u32_u24 v{vT+3}, 1152, v{vT+3}
    v_lshl_add_u32 v{vT+3}, v{vT+2}, 4, v{vT+3}
    v_lshl_add_u32 v{vT+3}, v{vT+4}, 3, v{vT+3}
    v_add_u32 v{vPR}, s{sT0}, v{vT+3}
    s_lshl_b32 s{sT0}, s{sRT}, 2
    s_add_u32 s{sT0}, s{sT0}, s{sRG}
    s_lshl_b32 s{sT0}, s{sT0}, 4
    s_add_u32 s{sT0}, s{sT0}, s{sH}
    s_lshl_b32 s{sT0}, s{sT0}, 12
    v_lshl_add_u32 v{vPQ}, v{vLane}, 4, s{sT0}
    s_mov_b32 s{sPHQ}, {WS_PHQ}
    s_lshl_b32 s{sT0}, s{sH}, 12
    s_lshl_b32 s{sT1}, s{sRG}, 10
    s_add_u32 s{sT0}, s{sT0}, s{sT1}
    v_lshl_add_u32 v{vAO}, v{vLane}, 2, s{sT0}
    """)
    A("s_barrier")
    dma(1)
    waits = [5, 5, 21, 21, 5, 5, 0]
    for st in range(7):
        if st == 0: ST("setup_done")
        A(f"s_waitcnt vmcnt({waits[st]})")
        A("s_barrier")
        if st in (0, 1, 2, 3, 5, 6): ST(f"st{st}")
        sl = (st % 4)*SLOT
        if st == 0:
            lab = A.label("A1_z")
            A(f"""s_cmp_lg_u32 s{sW}, 0
            s_cbranch_scc1 {lab}
            v_readfirstlane_b32 s{sT0}, v{vTK}
            s_cmp_lg_u32 s{sT0}, 0
            s_cbranch_scc1 {lab}
            s_mov_b32 s{sFirst}, 1
            s_lshl_b32 s{sT0}, s{sHP}, 13
            v_lshl_add_u32 v{vT+8}, v{vLane}, 4, s{sT0}
            v_mov_b32 v{vT+12}, 0
            v_mov_b32 v{vT+13}, 0
            v_mov_b32 v{vT+14}, 0
            v_mov_b32 v{vT+15}, 0
            v_add_u32 v{vT+9}, 4096, v{vT+8}""")
            for i in range(8):
                A(f"buffer_store_dwordx4 {v(vT+12,4)}, v{vT+8+(i>>2)}, s[{SWS}:{SWS+3}], 0 offen offset:{1024*(i&3)} sc1")
            A(f"{lab}:")
        if st == 4:
            lab = A.label("A1_f")
            A(f"""s_cmp_eq_u32 s{sFirst}, 0
            s_cbranch_scc1 {lab}
            s_waitcnt vmcnt(0)
            s_lshl_b32 s{sT0}, s{sHP}, 2
            v_mov_b32 v{vT+8}, s{sT0}
            v_mov_b32 v{vT+9}, 1
            s_mov_b64 exec, 1
            global_store_dword v{vT+8}, v{vT+9}, s[32:33] offset:64 sc1
            s_mov_b64 exec, -1
            {lab}:""")
        pend = []
        if st + 2 <= 6:
            dma_pre(st+2)
            pend = [dma_one(st+2, i) for i in range(5)]
        def dm(n=1):
            for _ in range(n):
                if pend: A(pend.pop(0))
        for j in range(4):
            A(f"v_add_u32 v{vXC+j}, {sl}, v{vXR+j}")
        A(f"v_add_u32 v{vWC}, {sl}, v{vWR}")
        def rd(j):
            b = FR + 16*j
            A(f"ds_read_b128 {v(b,4)}, v{vXC+j}")
            for t in (1, 0, 2):
                for e2 in range(2):
                    A(f"ds_read_b64_tr_b16 {v(b+4+4*t+2*e2,2)}, v{vWC} offset:{t*8192+j*2048+e2*512}")
        def mm(j):
            b = FR + 16*j
            z = (st == 0 and j == 0)
            A(f"v_mfma_f32_32x32x16_bf16 {v(aK,16)}, {v(b+8,4)}, {v(b,4)}, {'0' if z else v(aK,16)}")
            A(f"v_mfma_f32_32x32x16_bf16 {v(aQ,16)}, {v(b+4,4)}, {v(b,4)}, {'0' if z else v(aQ,16)}")
            A(f"v_mfma_f32_32x32x16_bf16 {v(aV,16)}, {v(b,4)}, {v(b+12,4)}, {'0' if z else v(aV,16)}")
        rd(0); rd(1)
        dm()
        A("s_waitcnt lgkmcnt(7)"); mm(0)
        rd(2)
        dm()
        A("s_waitcnt lgkmcnt(7)"); mm(1)
        rd(3)
        dm()
        A("s_waitcnt lgkmcnt(7)"); mm(2)
        dm()
        if st == 5:
            for p in range(8):
                A(f"v_lshl_or_b32 v{vWP+p}, v{vWT+2*p+1}, 16, v{vWT+2*p}")
        A("s_waitcnt lgkmcnt(0)"); mm(3)
        dm(5)
        if st == 1: wphi_loads()
    ST("main_done")
    lab = A.label("A1_p")
    A(f"""s_lshl_b32 s{sT0}, s{sHP}, 2
    v_mov_b32 v{vFA}, s{sT0}
    s_cmp_lg_u32 s{sW}, 0
    s_cbranch_scc1 {lab}
    global_load_dword v{vFL}, v{vFA}, s[32:33] offset:64 sc1
    {lab}:""")
    PKK, PKQ, PKV = 112, 120, 128
    pK, pQ = 136, 152
    A("s_nop 7\ns_nop 7")
    for p in range(8): A(f"v_cvt_pk_bf16_f32 v{PKK+p}, v{aK+2*p}, v{aK+2*p+1}")
    for p in range(8): A(f"v_cvt_pk_bf16_f32 v{PKQ+p}, v{aQ+2*p}, v{aQ+2*p+1}")
    A(f"v_mfma_f32_32x32x16_bf16 {v(pK,16)}, {v(vWP,4)}, {v(PKK,4)}, 0")
    A(f"v_mfma_f32_32x32x16_bf16 {v(pK,16)}, {v(vWP+4,4)}, {v(PKK+4,4)}, {v(pK,16)}")
    A(f"v_mfma_f32_32x32x16_bf16 {v(pQ,16)}, {v(vWP,4)}, {v(PKQ,4)}, 0")
    A(f"v_mfma_f32_32x32x16_bf16 {v(pQ,16)}, {v(vWP+4,4)}, {v(PKQ+4,4)}, {v(pQ,16)}")
    A(f"""v_and_b32 v{vT}, 31, v{vLane}
    v_cmp_eq_u32 vcc, 28, v{vT}
    v_mov_b32 v{vT+1}, 0x3f803f80""")
    for p in range(8):
        A(f"v_cvt_pk_bf16_f32 v{PKV+p}, v{aV+2*p}, v{aV+2*p+1}")
    for p in range(8):
        A(f"v_cndmask_b32 v{PKV+p}, v{PKV+p}, v{vT+1}, vcc")
    vC, vM = 24, 26
    A(f"""v_mov_b32 v{vC}, {hex(L2E)}
    v_mov_b32 v{vC+1}, {hex(L2E | 0x80000000)}
    v_cmp_gt_u32 vcc, 32, v{vLane}
    v_mov_b32 v{vM}, 0
    s_nop 0
    v_cndmask_b32 v{vM}, v{vM}, 1.0, vcc""")
    def softmax(P, EP, EN, OUT):
        mx, mx2, mn, mn2 = vT, vT+1, vT+2, vT+3
        A(f"""v_max3_f32 v{mx}, v{P}, v{P+1}, v{P+2}
        v_min3_f32 v{mn}, v{P}, v{P+1}, v{P+2}
        v_max3_f32 v{mx2}, v{P+3}, v{P+4}, v{P+5}
        v_min3_f32 v{mn2}, v{P+3}, v{P+4}, v{P+5}""")
        for k in range(6, 14, 4):
            A(f"""v_max3_f32 v{mx}, v{mx}, v{P+k}, v{P+k+1}
            v_min3_f32 v{mn}, v{mn}, v{P+k}, v{P+k+1}
            v_max3_f32 v{mx2}, v{mx2}, v{P+k+2}, v{P+k+3}
            v_min3_f32 v{mn2}, v{mn2}, v{P+k+2}, v{P+k+3}""")
        A(f"""v_max3_f32 v{mx}, v{mx}, v{P+14}, v{P+15}
        v_min3_f32 v{mn}, v{mn}, v{P+14}, v{P+15}
        v_max_f32 v{mx}, v{mx}, v{mx2}
        v_min_f32 v{mn}, v{mn}, v{mn2}
        v_mov_b32 v{mx2}, v{mx}
        v_mov_b32 v{mn2}, v{mn}
        s_nop 1
        v_permlane32_swap_b32 v{mx}, v{mx2}
        v_permlane32_swap_b32 v{mn}, v{mn2}
        s_nop 0
        v_max_f32 v{mx}, v{mx}, v{mx2}
        v_min_f32 v{mn}, v{mn}, v{mn2}
        v_mul_f32 v{vT+4}, v{vC+1}, v{mx}
        v_mul_f32 v{vT+5}, v{vC}, v{mn}""")
        N = vT+4
        for k in range(0, 16, 2):
            A(f"v_pk_fma_f32 {v(EP+k,2)}, {v(P+k,2)}, {v(vC,2)}, {v(N,2)} op_sel:[0,0,0] op_sel_hi:[1,0,0]")
            A(f"v_pk_fma_f32 {v(EN+k,2)}, {v(P+k,2)}, {v(vC,2)}, {v(N,2)} op_sel:[0,1,1] op_sel_hi:[1,1,1]")
        for k in range(16):
            A(f"v_exp_f32 v{EP+k}, v{EP+k}")
            A(f"v_exp_f32 v{EN+k}, v{EN+k}")
        SP_, SN_, TP, TN = vT, vT+2, vT+4, vT+6
        A(f"""v_pk_add_f32 {v(SP_,2)}, {v(EP,2)}, {v(EP+2,2)}
        v_pk_add_f32 {v(SN_,2)}, {v(EN,2)}, {v(EN+2,2)}
        v_pk_add_f32 {v(TP,2)}, {v(EP+12,2)}, {v(EP+14,2)}
        v_pk_add_f32 {v(TN,2)}, {v(EN+12,2)}, {v(EN+14,2)}""")
        for k in range(4, 12, 2):
            A(f"""v_pk_add_f32 {v(SP_,2)}, {v(SP_,2)}, {v(EP+k,2)}
            v_pk_add_f32 {v(SN_,2)}, {v(SN_,2)}, {v(EN+k,2)}""")
        A(f"""v_pk_fma_f32 {v(SP_,2)}, {v(TP,2)}, {v(vM,2)}, {v(SP_,2)} op_sel:[0,0,0] op_sel_hi:[1,0,1]
        v_pk_fma_f32 {v(SN_,2)}, {v(TN,2)}, {v(vM,2)}, {v(SN_,2)} op_sel:[0,0,0] op_sel_hi:[1,0,1]
        v_add_f32 v{SP_}, v{SP_}, v{SP_+1}
        v_add_f32 v{SN_}, v{SN_}, v{SN_+1}
        v_mov_b32 v{SP_+1}, v{SP_}
        v_mov_b32 v{SN_+1}, v{SN_}
        s_nop 1
        v_permlane32_swap_b32 v{SP_}, v{SP_+1}
        v_permlane32_swap_b32 v{SN_}, v{SN_+1}
        s_nop 0
        v_add_f32 v{SP_}, v{SP_}, v{SP_+1}
        v_add_f32 v{SN_}, v{SN_}, v{SN_+1}
        v_rcp_f32 v{SP_}, v{SP_}
        v_rcp_f32 v{SN_}, v{SN_}
        s_nop 0
        v_mul_f32 v{SP_+1}, v{vM}, v{SP_}
        v_mul_f32 v{SN_+1}, v{vM}, v{SN_}""")
        for k in range(0, 16, 2):
            sel = "op_sel:[0,0] op_sel_hi:[1,0]" if k < 12 else "op_sel:[0,1] op_sel_hi:[1,1]"
            A(f"v_pk_mul_f32 {v(EP+k,2)}, {v(EP+k,2)}, {v(SP_,2)} {sel}")
            A(f"v_pk_mul_f32 {v(EN+k,2)}, {v(EN+k,2)}, {v(SN_,2)} {sel}")
        for p in range(8):
            A(f"v_cvt_pk_bf16_f32 v{OUT+p}, v{EP+2*p}, v{EP+2*p+1}")
        for p in range(8):
            A(f"v_cvt_pk_bf16_f32 v{OUT+8+p}, v{EN+2*p}, v{EN+2*p+1}")
    EP, EN = 64, 80
    FK = 168
    FK, FQ = 184, 200
    A("s_nop 7")
    softmax(pK, EP, EN, FK)
    ST("smK_done")
    TP_, TN_ = 64, 80
    A("s_nop 1")
    A(f"v_mfma_f32_32x32x16_bf16 {v(TP_,16)}, {v(FK,4)}, {v(vID,4)}, 0")
    A(f"v_mfma_f32_32x32x16_bf16 {v(TN_,16)}, {v(FK+8,4)}, {v(vID,4)}, 0")
    A(f"v_mfma_f32_32x32x16_bf16 {v(TP_,16)}, {v(FK+4,4)}, {v(vID+4,4)}, {v(TP_,16)}")
    A(f"v_mfma_f32_32x32x16_bf16 {v(TN_,16)}, {v(FK+12,4)}, {v(vID+4,4)}, {v(TN_,16)}")
    softmax(pQ, 216, 232, FQ)
    A("s_nop 1")
    for st in range(4):
        A(f"buffer_store_dwordx4 {v(FQ+4*st,4)}, v{vPQ}, s[{SWS}:{SWS+3}], s{sPHQ} offen offset:{1024*st}")
    ST("smQ_done")
    GA = 136
    for p in range(8): A(f"v_cvt_pk_bf16_f32 v{GA+p}, v{TP_+2*p}, v{TP_+2*p+1}")
    for p in range(8): A(f"v_cvt_pk_bf16_f32 v{GA+8+p}, v{TN_+2*p}, v{TN_+2*p+1}")
    KP_, KN_ = 96, 152
    A("s_nop 1")
    A(f"v_mfma_f32_32x32x16_bf16 {v(KP_,16)}, {v(GA,4)}, {v(PKV,4)}, 0")
    A(f"v_mfma_f32_32x32x16_bf16 {v(KN_,16)}, {v(GA+8,4)}, {v(PKV,4)}, 0")
    A(f"v_mfma_f32_32x32x16_bf16 {v(KP_,16)}, {v(GA+4,4)}, {v(PKV+4,4)}, {v(KP_,16)}")
    A(f"v_mfma_f32_32x32x16_bf16 {v(KN_,16)}, {v(GA+12,4)}, {v(PKV+4,4)}, {v(KN_,16)}")
    A("s_nop 7\ns_nop 7\ns_nop 3")
    for sign, R in ((0, KP_), (1, KN_)):
        for j in range(2):
            for q in range(2):
                A(f"ds_write_b128 v{vPW}, {v(R+8*j+4*q,4)} offset:{(2*sign+j)*2304 + q*1152}")
    ST("kv_done")
    l1, l2 = A.label("A1_q"), A.label("A1_r")
    A(f"""s_cmp_lg_u32 s{sW}, 0
    s_cbranch_scc1 {l2}
    s_waitcnt vmcnt(4)
    {l1}:
    v_readfirstlane_b32 s{sT0}, v{vFL}
    s_cmp_lg_u32 s{sT0}, 0
    s_cbranch_scc1 {l2}
    global_load_dword v{vFL}, v{vFA}, s[32:33] offset:64 sc1
    s_waitcnt vmcnt(0)
    s_branch {l1}
    {l2}:
    s_waitcnt lgkmcnt(0)
    s_barrier""")
    ST("bar_done")
    R = 64
    def rdp(i):
        for src in range(4):
            A(f"ds_read_b64 {v(R+8*i+2*src,2)}, v{vPR} offset:{src*PART_W + i*256}")
    for i in range(3): rdp(i)
    for i in range(4):
        A(f"s_waitcnt lgkmcnt({[8,8,4,0][i]})")
        if i == 0: pass
        b = R+8*i
        A(f"""v_pk_add_f32 {v(b,2)}, {v(b,2)}, {v(b+2,2)}
        v_pk_add_f32 {v(b+4,2)}, {v(b+4,2)}, {v(b+6,2)}
        v_pk_add_f32 {v(b,2)}, {v(b,2)}, {v(b+4,2)}
        v_cvt_pk_bf16_f32 v{b}, v{b}, v{b+1}
        buffer_atomic_pk_add_bf16 v{b}, v{vAO}, s[{SWS}:{SWS+3}], 0 offen offset:{256*i}""")
        if i == 0: rdp(3)
    ST("end"); ST("rt1", True)
    ST.dump(2, sW)
    A("s_endpgm")
```

```python
from asmlib import *
import os

STG_W   = 54*272
STG     = 0
KC      = 0
KC_D    = 4*4160
XCH     = 66560
UT      = 8*STG_W
UT_D    = 4608
KP      = UT + 4*UT_D
KP_D    = 3200
B_LDS   = KP + 4*KP_D
WS_YT   = 8 << 20

def cmul(A, out, z, m, conj=False):
    A(f"v_pk_mul_f32 {v(out,2)}, {v(z,2)}, {v(m,2)} op_sel:[0,0] op_sel_hi:[1,0]")
    neg = "neg_hi:[1,0,0]" if conj else "neg_lo:[1,0,0]"
    A(f"v_pk_fma_f32 {v(out,2)}, {v(z,2)}, {v(m,2)}, {v(out,2)} op_sel:[1,1,0] op_sel_hi:[0,1,1] {neg}")

def gen_B(A, sWG=2):
    sG, sD0, sW, sDD, sHALF = 36, 37, 38, 39, 40
    sT0, sT1, sT2 = 41, 42, 43
    SRD_WS = 44
    sLD = 48
    sYT = 50
    EX0 = 52
    sDS = 54
    vLane, vP, vU, vEA, vKW, vSW, vSR = 1, 2, 8, 16, 38, 39, 40
    vKA = 41
    vCA, vCB, vXW, vXR, vYO, vDT = 46, 47, 48, 49, 50, 51
    vT = 52
    vUR = 252
    ST = Stamper(A)
    ST("rt0", True); ST("start")
    A(f"""
    s_sub_u32 s{sT0}, s{sWG}, 128
    s_and_b32 s{sT1}, s{sT0}, 7
    s_mul_i32 s{sT1}, s{sT1}, 14
    s_lshr_b32 s{sT0}, s{sT0}, 3
    s_add_u32 s{sG}, s{sT0}, s{sT1}
    s_lshl_b32 s{sD0}, s{sG}, 2
    v_lshrrev_b32 v{vT}, 6, v0
    v_and_b32 v{vLane}, 63, v0
    s_nop 0
    v_readfirstlane_b32 s{sW}, v{vT}
    s_lshl_b32 s{sT0}, s{sG}, 3
    s_waitcnt lgkmcnt(0)
    s_load_dwordx2 s[{sLD}:{sLD+1}], s[26:27], s{sT0}
    s_load_dwordx2 s[{sDS}:{sDS+1}], s[28:29], s{sT0}
    s_lshr_b32 s{sDD}, s{sW}, 1
    s_and_b32 s{sHALF}, s{sW}, 1
    """)
    A(f"""
    s_add_u32 s{sT0}, s{sD0}, s{sDD}
    s_lshl_b32 s{sT0}, s{sT0}, 9
    s_lshl_b32 s{sT1}, s{sHALF}, 8
    s_add_u32 s{sT0}, s{sT0}, s{sT1}
    v_lshl_add_u32 v{vT}, v{vLane}, 2, s{sT0}
    global_load_dword v{vP+0}, v{vT}, s[14:15]
    global_load_dword v{vP+1}, v{vT}, s[16:17]
    global_load_dword v{vP+2}, v{vT}, s[18:19]
    global_load_dword v{vP+3}, v{vT}, s[20:21]
    global_load_dword v{vP+4}, v{vT}, s[22:23]
    global_load_dword v{vP+5}, v{vT}, s[24:25]
    """)
    vUA, vUI = 253, 254
    sUA = 56
    A(f"""
    s_sub_u32 s{sT0}, s{sWG}, 128
    s_lshr_b32 s{sT0}, s{sT0}, 3
    s_and_b32 s{sUA}, s{sT0}, 3
    s_lshr_b32 s{sT0}, s{sT0}, 2
    s_lshl_b32 s{sT0}, s{sT0}, 7
    v_add_u32 v{vUI}, s{sT0}, v0
    v_and_b32 v{vUI}, 511, v{vUI}
    s_movk_i32 s{sT1}, 3584
    s_lshl_b32 s{sT0}, s{sG}, 3
    v_mul_lo_u32 v{vUA}, v{vUI}, s{sT1}
    v_add_u32 v{vUA}, s{sT0}, v{vUA}
    """)
    def uload(r):
        return f"""s_add_u32 s{sT0}, s{sUA}, {r}
        s_and_b32 s{sT0}, s{sT0}, 3
        s_mul_i32 s{sT0}, s{sT0}, 896
        v_add_u32 v{vT+12}, s{sT0}, v{vUA}
        global_load_dwordx2 {v(vU+2*r,2)}, v{vT+12}, s[12:13]"""
    srd(A, SRD_WS, 34, 0x10000000)
    ST("loads_issued")
    Z = 60
    A(f"""
    v_mov_b32 v{Z}, 0
    v_mov_b32 v{Z+1}, 0
    v_mov_b32 v{Z+2}, 0
    v_mov_b32 v{Z+3}, 0
    v_lshlrev_b32 v{vT}, 4, v0
    v_add_u32 v{vT}, {KP}, v{vT}
    ds_write_b128 v{vT}, {v(Z,4)}
    v_subrev_u32 v{vT+1}, 288, v0
    v_lshrrev_b32 v{vT+2}, 5, v{vT+1}
    v_and_b32 v{vT+1}, 31, v{vT+1}
    v_mul_u32_u24 v{vT+2}, {UT_D}, v{vT+2}
    v_lshl_add_u32 v{vT+2}, v{vT+1}, 4, v{vT+2}
    v_add_u32 v{vT+2}, {UT}, v{vT+2}
    v_add_u32 v{vT+3}, 8192, v{vT}
    v_cmp_gt_u32 vcc, 288, v0
    s_nop 1
    v_cndmask_b32 v{vT+2}, v{vT+2}, v{vT+3}, vcc
    v_cmp_gt_u32 vcc, 416, v0
    s_nop 1
    v_cndmask_b32 v{vT+2}, v{vT}, v{vT+2}, vcc
    ds_write_b128 v{vT+2}, {v(Z,4)}
    """)
    A(f"""
    s_mul_i32 s{sT0}, s{sW}, {STG_W}
    v_lshl_add_u32 v{vSW}, v{vLane}, 2, s{sT0}
    v_and_b32 v{vT}, 31, v{vLane}
    v_lshrrev_b32 v{vT+1}, 5, v{vLane}
    v_mul_u32_u24 v{vSR}, 272, v{vT}
    v_lshl_add_u32 v{vSR}, v{vT+1}, 4, v{vSR}
    v_add_u32 v{vSR}, s{sT0}, v{vSR}
    s_mul_i32 s{sT1}, s{sDD}, {KP_D}
    s_add_u32 s{sT1}, s{sT1}, {KP+16}
    v_lshlrev_b32 v{vKA}, 5, v{vT}
    v_lshl_add_u32 v{vKA}, v{vT+1}, 4, v{vKA}
    v_add_u32 v{vKA}, s{sT1}, v{vKA}
    v_lshlrev_b32 v{vKA+1}, 4, v{vT}
    v_lshl_add_u32 v{vKA+1}, v{vT+1}, 3, v{vKA+1}
    v_add_u32 v{vKA+1}, s{sT1}, v{vKA+1}
    v_lshlrev_b32 v{vKA+2}, 3, v{vT}
    v_lshl_add_u32 v{vKA+2}, v{vT+1}, 2, v{vKA+2}
    v_add_u32 v{vKA+2}, s{sT1}, v{vKA+2}
    v_lshlrev_b32 v{vKA+3}, 2, v{vT}
    v_lshl_add_u32 v{vKA+3}, v{vT+1}, 7, v{vKA+3}
    v_add_u32 v{vKA+3}, s{sT1}, v{vKA+3}
    v_lshlrev_b32 v{vKA+4}, 2, v{vLane}
    v_add_u32 v{vKA+4}, 2600, v{vKA+4}
    v_mov_b32 v{vT+2}, 2560
    v_cmp_eq_u32 vcc, 0, v{vLane}
    s_nop 1
    v_cndmask_b32 v{vKA+4}, v{vKA+4}, v{vT+2}, vcc
    v_add_u32 v{vKA+4}, s{sT1}, v{vKA+4}
    """)
    A(f"""
    s_lshl_b32 s{sT2}, s{sHALF}, 6
    v_add_u32 v{vT}, s{sT2}, v{vLane}
    s_mul_i32 s{sT0}, s{sDD}, {KC_D}
    v_lshl_add_u32 v{vKW}, v{vT}, 4, s{sT0}
    v_lshlrev_b32 v{vT}, 3, v{vT}
    s_sub_u32 s{sT2}, s{sT1}, {4*0x4280}
    """)
    for it in range(2):
        A(f"v_sub_u32 v{vT+1}, {2047-1024*it}, v{vT}")
        for q in range(0, 11, 2):
            two = q+1 < 11
            A(f"""v_subrev_u32 v{vT+2}, {q}, v{vT+1}
            v_cvt_f32_i32 v{vT+3}, v{vT+2}""")
            if two:
                A(f"""v_subrev_u32 v{vT+4}, {q+1}, v{vT+1}
                v_cvt_f32_i32 v{vT+5}, v{vT+4}
                v_cvt_pk_bf16_f32 v{vT+6}, v{vT+3}, v{vT+5}""")
            else:
                A(f"v_cvt_pk_bf16_f32 v{vT+6}, v{vT+3}, v{vT+3}")
            d0 = vEA + 11*it + q
            A(f"""v_and_b32 v{vT+7}, 0xffff, v{vT+6}
            v_lshl_add_u32 v{d0}, v{vT+7}, 2, s{sT2}""")
            if two:
                A(f"""v_lshrrev_b32 v{vT+7}, 16, v{vT+6}
                v_lshl_add_u32 v{d0+1}, v{vT+7}, 2, s{sT2}""")
            if it == 1:
                A(f"""v_cmp_ge_i32 vcc, 256, v{vT+2}
                v_lshl_add_u32 v{vT+7}, v{vT+2}, 2, s{sT1}
                s_nop 0
                v_cndmask_b32 v{d0}, v{d0}, v{vT+7}, vcc""")
                if two:
                    A(f"""v_cmp_ge_i32 vcc, 256, v{vT+4}
                    v_lshl_add_u32 v{vT+7}, v{vT+4}, 2, s{sT1}
                    s_nop 0
                    v_cndmask_b32 v{d0+1}, v{d0+1}, v{vT+7}, vcc""")
    A(f"""
    v_and_b32 v{vT}, 15, v{vLane}
    v_lshrrev_b32 v{vT+1}, 4, v{vLane}
    v_add_u32 v{vT+2}, 1, v{vT}
    v_and_b32 v{vT+2}, 3, v{vT+2}
    v_sub_u32 v{vT+3}, 15, v{vT}
    v_lshl_add_u32 v{vT+3}, v{vT+1}, 3, v{vT+3}
    v_add_u32 v{vT+3}, v{vT+3}, v{vT+2}
    v_add_u32 v{vT+4}, -4, v{vT+3}
    v_cmp_eq_u32 vcc, 0, v{vT+2}
    v_mul_u32_u24 v{vT+5}, 4160, v{vT+2}
    s_nop 0
    v_cndmask_b32 v{vT+3}, v{vT+4}, v{vT+3}, vcc
    v_lshl_add_u32 v{vCA}, v{vT+3}, 1, v{vT+5}
    s_mul_i32 s{sT0}, s{sDD}, {KC_D}
    s_sub_u32 s{sT1}, 1, s{sHALF}
    s_lshl_b32 s{sT1}, s{sT1}, 8
    s_add_u32 s{sT0}, s{sT0}, s{sT1}
    v_add_u32 v{vCA}, s{sT0}, v{vCA}
    v_lshlrev_b32 v{vCB}, 5, v{vT}
    v_lshl_add_u32 v{vCB}, v{vT+1}, 4, v{vCB}
    s_mul_i32 s{sT0}, s{sDD}, {UT_D}
    s_lshl_b32 s{sT1}, s{sHALF}, 8
    s_sub_u32 s{sT0}, s{sT0}, s{sT1}
    s_add_u32 s{sT0}, s{sT0}, {UT+512-224}
    v_add_u32 v{vCB}, s{sT0}, v{vCB}
    s_lshl_b32 s{sT0}, s{sW}, 12
    s_add_u32 s{sT1}, s{sT0}, {XCH}
    v_lshl_add_u32 v{vXW}, v{vLane}, 4, s{sT1}
    s_xor_b32 s{sT0}, s{sW}, 1
    s_lshl_b32 s{sT0}, s{sT0}, 12
    s_add_u32 s{sT1}, s{sT0}, {XCH}
    v_lshl_add_u32 v{vXR}, v{vLane}, 4, s{sT1}
    s_add_u32 s{sT0}, s{sD0}, s{sDD}
    s_lshl_b32 s{sT0}, s{sT0}, 12
    s_lshl_b32 s{sT1}, s{sHALF}, 11
    s_add_u32 s{sT0}, s{sT0}, s{sT1}
    v_lshl_add_u32 v{vYO}, v{vLane}, 4, s{sT0}
    s_mov_b32 s{sYT}, {WS_YT}
    s_mul_i32 s{sT0}, s{sDD}, {UT_D}
    s_lshl_b32 s{sT1}, s{sHALF}, 11
    s_add_u32 s{sT0}, s{sT0}, s{sT1}
    s_add_u32 s{sT0}, s{sT0}, {UT+512}
    v_and_b32 v{vT+2}, 1, v{vT+1}
    v_lshlrev_b32 v{vT+2}, 9, v{vT+2}
    v_lshl_add_u32 v{vT+2}, v{vT}, 5, v{vT+2}
    v_lshrrev_b32 v{vT+3}, 1, v{vT+1}
    v_lshl_add_u32 v{vT+2}, v{vT+3}, 4, v{vT+2}
    v_add_u32 v{vUR}, s{sT0}, v{vT+2}
    """)
    ST("addr_done")
    A(f"""
    s_waitcnt lgkmcnt(0)
    s_barrier
    s_cmp_ge_u32 s{sDD}, 2
    s_cselect_b32 s{sT0}, s{sLD+1}, s{sLD}
    s_and_b32 s{sT1}, s{sDD}, 1
    s_lshl_b32 s{sT1}, s{sT1}, 4
    s_lshr_b32 s{sT0}, s{sT0}, s{sT1}
    s_lshl_b32 s{sT0}, s{sT0}, 16
    s_cmp_ge_u32 s{sDD}, 2
    s_cselect_b32 s{sDS}, s{sDS+1}, s{sDS}
    s_lshr_b32 s{sDS}, s{sDS}, s{sT1}
    s_lshl_b32 s{sDS}, s{sDS}, 16
    s_mov_b32 s{sDS+1}, s{sDS}
    v_mov_b32 v{vT}, s{sT0}
    s_mov_b32 s{sT1}, 0x3fb8aa3b
    v_mul_f32 v{vT+1}, s{sT1}, v{vT}
    v_rndne_f32 v{vT+1}, v{vT+1}
    v_fma_f32 v{vT+2}, v{vT}, s{sT1}, -v{vT+1}
    v_mov_b32 v{vT+3}, 0x32a57060
    v_fma_f32 v{vT+2}, v{vT}, v{vT+3}, v{vT+2}
    v_exp_f32 v{vT+2}, v{vT+2}
    v_cvt_i32_f32 v{vT+1}, v{vT+1}
    s_nop 0
    v_ldexp_f32 v{vT+2}, v{vT+2}, v{vT+1}
    v_cvt_pk_bf16_f32 v{vT+2}, v{vT+2}, v{vT+2}
    v_lshlrev_b32 v{vDT}, 16, v{vT+2}
    """)
    E1,E2,E3,E4,E6,E8,E256,E512,E768,E1024,QA,QB,TA,TB = [64+2*i for i in range(14)]
    FA, FB, ACC = 96, 128, 160
    LOG2E = 0x3fb8aa3b
    def wrow(row, pair):
        A(f"""v_cvt_pk_bf16_f32 v{vT+8}, v{pair}, v{pair+1}
        ds_write_b32 v{vSW}, v{vT+8} offset:{row*272}""")
    tog = [0]
    def wrow2(row, pair):
        t = vT + 8 + tog[0]; tog[0] = (tog[0]+1) % 4
        A(f"""v_cvt_pk_bf16_f32 v{t}, v{pair}, v{pair+1}
        ds_write_b32 v{vSW}, v{t} offset:{row*272}""")
    def setup(c):
        for k in range(6):
            if c == 0: A(f"v_lshlrev_b32 v{vT+k}, 16, v{vP+k}")
            else:      A(f"v_and_b32 v{vT+k}, 0xffff0000, v{vP+k}")
        A(f"""
        v_mul_f32 v{vT}, v{vDT}, v{vT}
        v_mul_f32 v{vT+1}, v{vDT}, v{vT+1}
        v_mul_f32 v{vT+2}, v{vDT}, v{vT+2}
        v_mul_f32 v{vT+3}, v{vDT}, v{vT+3}
        v_mul_f32 v{vT}, {LOG2E}, v{vT}
        v_mul_f32 v{vT+1}, 0.15915494, v{vT+1}
        """)
        cmul(A, QA, vT+4, vT+2)
        A(f"v_xor_b32 v{QA+1}, 0x80000000, v{QA+1}")
        for (dst, mul) in ((E1, 1.0), (E8, 8.0), (E256, 256.0)):
            if mul == 1.0:
                A(f"""v_exp_f32 v{vT+2}, v{vT}
                v_fract_f32 v{vT+3}, v{vT+1}""")
            else:
                A(f"""v_mul_f32 v{vT+2}, {hex(f2u(mul))}, v{vT}
                v_mul_f32 v{vT+3}, {hex(f2u(mul))}, v{vT+1}
                v_exp_f32 v{vT+2}, v{vT+2}
                v_fract_f32 v{vT+3}, v{vT+3}""")
            A(f"""v_cos_f32 v{dst}, v{vT+3}
            v_sin_f32 v{dst+1}, v{vT+3}
            s_nop 0
            v_mul_f32 v{dst}, v{vT+2}, v{dst}
            v_mul_f32 v{dst+1}, v{vT+2}, v{dst+1}""")
    def rows(c, mf, extra):
        mf = list(mf)
        def slot():
            if mf: A(mf.pop(0))
        if c == 0:
            A(f"""v_mov_b32 v{vT+8}, 0x3f80
            ds_write_b32 v{vSW}, v{vT+8} offset:0""")
        wrow2(1, E1)
        cmul(A, E2, E1, E1); wrow2(2, E2); slot()
        cmul(A, E3, E2, E1); wrow2(3, E3)
        cmul(A, E4, E2, E2); wrow2(4, E4); slot()
        cmul(A, TA, E4, E1); wrow2(5, TA)
        cmul(A, E6, E3, E3); wrow2(6, E6); slot()
        cmul(A, TB, E4, E3); wrow2(7, TB)
        wrow2(8, E256); slot()
        cmul(A, TA, E256, E2); wrow2(9, TA)
        cmul(A, TB, E256, E4); wrow2(12, TB); slot()
        cmul(A, TA, E256, E6); wrow2(13, TA)
        cmul(A, E512, E256, E256); wrow2(10, E512); slot()
        cmul(A, TB, E512, E4); wrow2(14, TB)
        cmul(A, E768, E512, E256); wrow2(11, E768); slot()
        cmul(A, TA, E768, E4); wrow2(15, TA)
        cmul(A, E1024, E512, E512); wrow2(16, E1024); slot()
        cmul(A, TB, E1024, E256); wrow2(20, TB)
        cmul(A, TA, E1024, E512); wrow2(17, TA)
        cmul(A, TB, E1024, E768); wrow2(21, TB)
        cmul(A, TA, E1024, E1024); wrow2(18, TA)
        E16 = E2
        cmul(A, QB, QA, E8, conj=True)
        cmul(A, E16, E8, E8)
        wrow2(22, QA); wrow2(23, QB)
        ca, cb, na, nb = QA, QB, TA, TB
        for j in range(2, 32, 2):
            if j in extra: A(extra[j])
            cmul(A, na, ca, E16, conj=True)
            cmul(A, nb, cb, E16, conj=True)
            wrow2(22+j, na); wrow2(23+j, nb)
            ca, na = na, ca
            cb, nb = nb, cb
        while mf: slot()
    def reads():
        for ks in range(8):
            A(f"ds_read_b128 {v(FA+4*ks,4)}, v{vSR} offset:{32*ks}")
            A(f"ds_read_b128 {v(FB+4*ks,4)}, v{vSR} offset:{22*272+32*ks}")
    def mfmas(first):
        out = []
        for ks in range(8):
            cc = "0" if (first and ks == 0) else v(ACC,16)
            out.append(f"v_mfma_f32_32x32x16_bf16 {v(ACC,16)}, {v(FA+4*ks,4)}, {v(FB+4*ks,4)}, {cc}")
        return out
    ST("dt_done")
    A("s_waitcnt vmcnt(0)")
    ST("params_in")
    A(uload(0))
    setup(0)
    rows(0, [], {14: uload(1)})
    ST("rows0")
    reads()
    A(uload(2))
    setup(1)
    A("s_waitcnt lgkmcnt(0)")
    rows(1, mfmas(True), {8: uload(3)})
    ST("rows1")
    reads()
    A("s_waitcnt lgkmcnt(0)")
    for m in mfmas(False): A(m)
    A("s_nop 7\ns_nop 7\ns_nop 3")
    ST("kmfma")
    XT = 64
    labh, labj, labh2, labj2 = A.label("B_kx1"), A.label("B_kxj"), A.label("B_ky1"), A.label("B_kyj")
    A(f"""
    s_mul_i32 s{sT0}, s{sW}, {STG_W}
    v_lshl_add_u32 v{vT}, v{vLane}, 4, s{sT0}
    s_xor_b32 s{sT1}, s{sW}, 1
    s_mul_i32 s{sT0}, s{sT1}, {STG_W}
    v_lshl_add_u32 v{vT+1}, v{vLane}, 4, s{sT0}
    s_cmp_eq_u32 s{sHALF}, 1
    s_cbranch_scc1 {labh}
    ds_write_b128 v{vT}, {v(ACC+6,4)}
    ds_write_b32 v{vT}, v{ACC+10} offset:1024
    s_branch {labj}
    {labh}:
    ds_write_b128 v{vT}, {v(ACC,4)}
    ds_write_b64 v{vT}, {v(ACC+4,2)} offset:1024
    {labj}:
    s_waitcnt lgkmcnt(0)
    s_barrier
    ds_read_b128 {v(XT,4)}, v{vT+1}
    ds_read_b64 {v(XT+4,2)}, v{vT+1} offset:1024
    s_cmp_eq_u32 s{sHALF}, 1
    s_cbranch_scc1 {labh2}
    s_waitcnt lgkmcnt(0)
    v_pk_add_f32 {v(XT,2)}, {v(XT,2)}, {v(ACC,2)}
    v_pk_add_f32 {v(XT+2,2)}, {v(XT+2,2)}, {v(ACC+2,2)}
    v_pk_add_f32 {v(XT+4,2)}, {v(XT+4,2)}, {v(ACC+4,2)}
    ds_write_b128 v{vKA}, {v(XT,4)}
    ds_write_b64 v{vKA+1}, {v(XT+4,2)} offset:{4*256}
    s_branch {labj2}
    {labh2}:
    s_waitcnt lgkmcnt(0)
    v_pk_add_f32 {v(XT,2)}, {v(XT,2)}, {v(ACC+6,2)}
    v_pk_add_f32 {v(XT+2,2)}, {v(XT+2,2)}, {v(ACC+8,2)}
    v_add_f32 v{XT+4}, v{XT+4}, v{ACC+10}
    ds_write_b32 v{vKA+2}, v{XT} offset:{4*384}
    ds_write_b32 v{vKA+2}, v{XT+1} offset:{4*448}
    ds_write_b32 v{vKA+3}, v{XT+2} offset:{4*512}
    ds_write_b32 v{vKA+3}, v{XT+3} offset:{4*576}
    ds_write_b32 v{vKA+4}, v{XT+4}
    {labj2}:
    s_waitcnt lgkmcnt(0)
    s_barrier""")
    ST("kadd_bar")
    EV = 64
    PK = 96
    for it in range(2):
        for q in range(11):
            A(f"ds_read_b32 v{EV+11*it+q}, v{vEA+11*it+q}")
        if it == 0:
            pass
    A(f"""
    v_and_b32 v{vT}, 1, v{vLane}
    v_bfe_u32 v{vT+1}, v{vLane}, 1, 4
    v_mul_u32_u24 v{vT+1}, 4160, v{vT+1}
    v_lshl_add_u32 v{vT+1}, v{vT}, 4, v{vT+1}
    v_mov_b32 v{Z}, 0
    v_mov_b32 v{Z+1}, 0
    v_mov_b32 v{Z+2}, 0
    v_mov_b32 v{Z+3}, 0
    ds_write_b128 v{vT+1}, {v(Z,4)} offset:4096
    """)
    for it in range(2):
        A(f"s_waitcnt lgkmcnt({12 if it == 0 else 5})")
        e = EV + 11*it
        p = PK + 16*it
        for (si, q0) in ((0, 0), (1, 3), (2, 2), (3, 1)):
            for k in range(4):
                A(f"v_cvt_pk_bf16_f32 v{p+4*si+k}, v{e+q0+2*k}, v{e+q0+2*k+1}")
            A(f"ds_write_b128 v{vKW}, {v(p+4*si,4)} offset:{si*4160+2048*it}")
    A(f"""
    s_mov_b32 s{sT0}, 0x05040100
    s_mov_b32 s{sT1}, 0x07060302
    v_lshlrev_b32 v{vT+10}, 3, v{vUI}
    v_add_u32 v{vT+10}, {UT+512}, v{vT+10}
    s_waitcnt vmcnt(0)
    """)
    labs = [A.label("B_u") for _ in range(5)]
    for a_ in range(1, 4):
        A(f"s_cmp_eq_u32 s{sUA}, {a_}\ns_cbranch_scc1 {labs[a_]}")
    for a_ in range(4):
        if a_: A(f"{labs[a_]}:")
        reg = lambda row: vU + 2*((row - a_) & 3)
        for dd in range(4):
            sel = sT0 if dd % 2 == 0 else sT1
            o = dd >> 1
            t = vT + 2*(dd & 1) + 4*(dd >> 1)
            A(f"""v_perm_b32 v{t}, v{reg(1)+o}, v{reg(0)+o}, s{sel}
            v_perm_b32 v{t+1}, v{reg(3)+o}, v{reg(2)+o}, s{sel}
            ds_write_b64 v{vT+10}, {v(t,2)} offset:{dd*UT_D}""")
        if a_ < 3: A(f"s_branch {labs[4]}")
    A(f"{labs[4]}:")
    A("s_waitcnt lgkmcnt(0)\ns_barrier")
    ST("expand_bar")
    CA = [64, 128]; CB = [96, 160]; CACC = 192
    PP, PU, PT = 224, 240, 248
    def cread(buf, rp):
        out = []
        for q in range(8):
            out.append(f"ds_read_b128 {v(CB[buf]+4*q,4)}, v{vCB} offset:{512*q+32*(7-rp)}")
        for p in range(8):
            off = 32*(119-rp-16*p)
            out.append(f"ds_read_b64 {v(CA[buf]+4*p,2)}, v{vCA} offset:{off}")
            out.append(f"ds_read_b64 {v(CA[buf]+4*p+2,2)}, v{vCA} offset:{off+8}")
        return out
    for r in cread(0, 1): A(r)
    for ri, rp in enumerate((1, 3, 5, 7)):
        buf = ri & 1
        nxt = cread(buf ^ 1, rp+2) if ri < 3 else []
        if ri == 2:
            nxt += [f"ds_read_b128 {v(PU+4*jp,4)}, v{vUR} offset:{1024*jp}" for jp in range(2)]
        if ri == 3:
            for k in range(8):
                t2 = PT + 2*(k & 1)
                nxt += [f"v_lshlrev_b32 v{t2}, 16, v{PU+k}\nv_and_b32 v{t2+1}, 0xffff0000, v{PU+k}",
                        f"v_pk_mul_f32 {v(t2,2)}, {v(t2,2)}, s[{sDS}:{sDS+1}]",
                        f"v_cvt_pk_bf16_f32 v{t2}, v{t2}, v{t2+1}",
                        f"v_lshlrev_b32 v{PP+2*k}, 16, v{t2}\nv_and_b32 v{PP+2*k+1}, 0xffff0000, v{t2}"]
        A("s_waitcnt lgkmcnt(0)")
        for p in range(8):
            for q in range(7-p, -1, -1):
                J = p+q
                cc = "0" if (ri == 0 and p == 0) else v(CACC+4*J,4)
                A(f"v_mfma_f32_16x16x32_bf16 {v(CACC+4*J,4)}, {v(CA[buf]+4*p,4)}, {v(CB[buf]+4*q,4)}, {cc}")
                if nxt: A(nxt.pop(0))
    ST("conv_done")
    lab1, lab2 = A.label("B_h1"), A.label("B_hx")
    A(f"""s_nop 7
    s_nop 1
    s_cmp_eq_u32 s{sHALF}, 1
    s_cbranch_scc1 {lab1}""")
    for j in range(4):
        A(f"ds_write_b128 v{vXW}, {v(CACC+16+4*j,4)} offset:{1024*j}")
    A(f"s_branch {lab2}\n{lab1}:")
    for j in range(4):
        A(f"ds_write_b128 v{vXW}, {v(CACC+4*j,4)} offset:{1024*j}")
    for j in range(16):
        A(f"v_mov_b32 v{CACC+j}, v{CACC+16+j}")
    A(f"""{lab2}:
    s_waitcnt lgkmcnt(0)
    s_barrier""")
    ST("xch_bar")
    X = 64
    for j in range(4):
        A(f"ds_read_b128 {v(X+4*j,4)}, v{vXR} offset:{1024*j}")
    for jp in range(2):
        A(f"s_waitcnt lgkmcnt({2 if jp == 0 else 0})")
        for k in range(8):
            A(f"v_add_f32 v{X+8*jp+k}, v{X+8*jp+k}, v{CACC+8*jp+k}")
        T = 96 + 4*jp
        A(f"""v_cvt_pk_bf16_f32 v{T}, v{X+8*jp}, v{X+8*jp+1}
        v_cvt_pk_bf16_f32 v{T+1}, v{X+8*jp+2}, v{X+8*jp+3}
        v_cvt_pk_bf16_f32 v{T+2}, v{X+8*jp+4}, v{X+8*jp+5}
        v_cvt_pk_bf16_f32 v{T+3}, v{X+8*jp+6}, v{X+8*jp+7}
        s_nop 1
        v_permlane16_swap_b32 v{T}, v{T+2}
        v_permlane16_swap_b32 v{T+1}, v{T+3}
        s_nop 1""")
        for k in range(4):
            t2 = PT + 2*(k & 1)
            A(f"""v_lshlrev_b32 v{t2}, 16, v{T+k}
            v_and_b32 v{t2+1}, 0xffff0000, v{T+k}
            v_pk_add_f32 {v(t2,2)}, {v(t2,2)}, {v(PP+8*jp+2*k,2)}
            v_cvt_pk_bf16_f32 v{T+k}, v{t2}, v{t2+1}""")
        A(f"""buffer_store_dwordx4 {v(T,4)}, v{vYO}, s[{SRD_WS}:{SRD_WS+3}], s{sYT} offen offset:{1024*jp}""")
    ST("end"); ST("rt1", True)
    ST.dump(2, sW)
    A("s_endpgm")

import struct
def f2u(x):
    return struct.unpack("<I", struct.pack("<f", x))[0]
```
